```python
import torch

def _softmax(x, axis=-1):
    return torch.softmax(x, dim=axis)
def _gelu(x):
    return torch.nn.functional.gelu(x, approximate="tanh")
def _silu(x):
    return torch.nn.functional.silu(x)
def _sigmoid(x):
    return torch.sigmoid(x)
def _layernorm(x, axis=-1, eps=1e-5):
    m = x.mean(dim=axis, keepdim=True)
    v = x.var(dim=axis, keepdim=True, unbiased=False)
    return (x - m) / torch.sqrt(v + eps)
def _scatter_add(tgt, idx, src, axis=0):
    return tgt.clone().index_add_(axis, idx, src)
def _segment_sum(src, seg, n):
    out = torch.zeros((n,) + src.shape[1:], dtype=src.dtype)
    return out.index_add_(0, seg, src)
def _pad(x, pw):
    flat = tuple(v for pair in reversed(pw) for v in pair)
    return torch.nn.functional.pad(x, flat)

kernel_name = 'gather_scatter__edge_featured_mpnn_egc__graph'

def setup_inputs():

    _w = (lambda a: (lambda t: t.to(torch.bfloat16) if t.is_floating_point() else t)(torch.as_tensor(a)))
    N, deg, D, De = 12500, 64, 64, max(4, 1)
    E = N * deg
    return {
        "x": _w((lambda *s: torch.randn(*s, dtype=torch.bfloat16) * 0.2)(N, D)),
        "e_attr": _w((lambda *s: torch.randn(*s, dtype=torch.bfloat16) * 0.2)(E, De)),
        "src": _w((lambda lo, hi, *s: torch.randint(lo, hi, s))(0, N, E).to(torch.int64)),
        "dst": _w((lambda lo, hi, *s: torch.randint(lo, hi, s))(0, N, E).to(torch.int64)),
        "u_w": _w((lambda *s: torch.randn(*s, dtype=torch.bfloat16) * 0.05)(D, D)),
        "v_w": _w((lambda *s: torch.randn(*s, dtype=torch.bfloat16) * 0.05)(D, D)),
        "g_w": _w((lambda *s: torch.randn(*s, dtype=torch.bfloat16) * 0.2)(2 * D + De, D)),
    }

def reference(x, e_attr, src, dst, u_w, v_w, g_w):
    N, D = x.shape
    g_in = torch.concatenate([x[dst], x[src], e_attr], axis=-1)
    eta = _sigmoid(g_in @ g_w)
    hv = x @ v_w
    msg = eta * hv[src]
    agg = _segment_sum(msg, dst, N)
    return _silu(x @ u_w + agg)
```

```python
import sys, math

N, D, E = 12500, 64, 800000
NCH, CH = 250, 3200
RECB = CH * 12
WS_OFF = 0x00A00000
WS_FRAG = 0x00B00000
WS_SIZE = WS_FRAG + 34 * 1024
NLOG2E = 0xBFB8AA3B

class Asm:
    def __init__(self):
        self.lines = []
    def __call__(self, s):
        for l in s.split("\n"):
            l = l.strip()
            if not l: continue
            if l.endswith(":"): self.lines.append(l)
            else: self.lines.append("    " + l)
    def text(self): return "\n".join(self.lines) + "\n"

def vr(a, n=1):
    return f"v{a}" if n == 1 else f"v[{a}:{a+n-1}]"
def sr(a, n=1):
    return f"s{a}" if n == 1 else f"s[{a}:{a+n-1}]"

def scan64(a, v):
    for sh in (1, 2, 4, 8):
        a("s_nop 1")
        a(f"v_add_u32_dpp v{v}, v{v}, v{v} row_shr:{sh} row_mask:0xf bank_mask:0xf bound_ctrl:1")
    a("s_nop 1")
    a(f"v_add_u32_dpp v{v}, v{v}, v{v} row_bcast:15 row_mask:0xa bank_mask:0xf")
    a("s_nop 1")
    a(f"v_add_u32_dpp v{v}, v{v}, v{v} row_bcast:31 row_mask:0xc bank_mask:0xf")

def gen_bin(opt):
    a = Asm()
    HIST, OFFS, STG = 0, 1024, 2048
    S_DST, S_SRC, S_EA, S_X, S_WS = 24, 28, 32, 36, 40
    stf = opt.get("k1_store_flags", "")
    a(f"""
    s_cmp_ge_u32 s2, 256
    s_cbranch_scc1 L1_end
    s_load_dwordx2 s[{S_DST}:{S_DST+1}], s[0:1], 24
    s_load_dwordx2 s[{S_SRC}:{S_SRC+1}], s[0:1], 16
    s_load_dwordx2 s[{S_EA}:{S_EA+1}], s[0:1], 8
    s_load_dwordx2 s[{S_X}:{S_X+1}], s[0:1], 0
    s_load_dwordx2 s[{S_WS}:{S_WS+1}], s[0:1], 72
    s_mov_b32 s{S_DST+2}, {E*4}
    s_mov_b32 s{S_DST+3}, 0x20000
    s_mov_b32 s{S_SRC+2}, {E*4}
    s_mov_b32 s{S_SRC+3}, 0x20000
    s_mov_b32 s{S_EA+2}, {E*8}
    s_mov_b32 s{S_EA+3}, 0x20000
    s_mov_b32 s{S_X+2}, {N*128}
    s_mov_b32 s{S_X+3}, 0x20000
    s_mov_b32 s{S_WS+2}, {WS_SIZE}
    s_mov_b32 s{S_WS+3}, 0x20000
    s_lshr_b32 s3, s2, 3
    s_mul_i32 s3, s3, 51200
    v_lshlrev_b32 v3, 6, v0
    v_add_u32 v3, s3, v3
    s_cmp_ge_u32 s2, {NCH}
    s_cbranch_scc1 L1_prep
    s_mul_i32 s20, s2, {CH*4}
    s_mul_i32 s21, s2, {CH*8}
    s_mul_i32 s44, s2, {RECB}
    v_lshlrev_b32 v1, 4, v0
    v_lshlrev_b32 v2, 5, v0
    v_lshlrev_b32 v4, 2, v0
    v_mov_b32 v5, 0
    ds_write_b32 v4, v5
    v_mov_b32 v6, 12
    v_cmp_gt_u32 vcc, {CH//4}, v0
    s_mov_b64 s[22:23], vcc
    s_mov_b64 exec, vcc
    s_mov_b32 s45, 0x05020100
    s_waitcnt lgkmcnt(0)
    buffer_load_dwordx4 v[8:11], v1, s[{S_DST}:{S_DST+3}], s20 offen
    buffer_load_dwordx4 v[12:15], v1, s[{S_SRC}:{S_SRC+3}], s20 offen
    buffer_load_dwordx4 v[16:19], v2, s[{S_EA}:{S_EA+3}], s21 offen
    buffer_load_dwordx4 v[20:23], v2, s[{S_EA}:{S_EA+3}], s21 offen offset:16
    buffer_load_dword v7, v3, s[{S_X}:{S_X+3}], 0 offen
    s_barrier
    s_waitcnt vmcnt(4)
    """)
    for i in range(4):
        a(f"v_and_b32 v{24+i}, 0xff, v{8+i}")
        a(f"v_lshlrev_b32 v{24+i}, 2, v{24+i}")
        a(f"ds_add_rtn_u32 v{28+i}, v{24+i}, v6 offset:{HIST}")
    a(f"""
    s_mov_b64 exec, -1
    v_and_b32 v40, 63, v0
    v_lshlrev_b32 v40, 4, v40
    s_waitcnt lgkmcnt(0)
    s_barrier
    ds_read_b128 v[32:35], v40 offset:{HIST}
    s_waitcnt lgkmcnt(0)
    v_add_u32 v41, v32, v33
    v_add_u32 v42, v41, v34
    v_add_u32 v43, v42, v35
    v_mov_b32 v44, v43
    """)
    scan64(a, 44)
    a(f"""
    v_sub_u32 v36, v44, v43
    v_add_u32 v37, v36, v32
    v_add_u32 v38, v36, v41
    v_add_u32 v39, v36, v42
    ds_write_b128 v40, v[36:39] offset:{OFFS}
    v_cmp_gt_u32 vcc, 64, v0
    s_and_b64 exec, exec, vcc
    s_cbranch_execz L1_nooff
    v_lshl_or_b32 v44, v32, 16, v36
    v_lshl_or_b32 v45, v33, 16, v37
    v_lshl_or_b32 v46, v34, 16, v38
    v_lshl_or_b32 v47, v35, 16, v39
    s_lshl_b32 s3, s2, 10
    s_add_u32 s3, s3, {WS_OFF}
    s_waitcnt vmcnt(0)
    buffer_store_dwordx4 v[44:47], v40, s[{S_WS}:{S_WS+3}], s3 offen {stf}
    L1_nooff:
    s_mov_b64 exec, s[22:23]
    s_waitcnt lgkmcnt(0)
    """)
    for i in range(4):
        a(f"ds_read_b32 v{24+i}, v{24+i} offset:{OFFS}")
    a("s_waitcnt vmcnt(1)")
    for i in range(4):
        a(f"v_lshlrev_b32 v{12+i}, 7, v{12+i}")
        a(f"v_perm_b32 v{12+i}, v{8+i}, v{12+i}, s45")
    for i in range(4):
        a(f"s_waitcnt lgkmcnt({3-i if i==0 else (3-i)+2*i})")
        a(f"v_add_u32 v{28+i}, v{28+i}, v{24+i}")
        a(f"v_add_u32 v{24+i}, {STG}, v{28+i}")
        a(f"ds_write2_b32 v{24+i}, v{16+2*i}, v{17+2*i} offset0:0 offset1:1")
        a(f"ds_write_b32 v{28+i}, v{12+i} offset:{STG+8}")
    a(f"""
    s_waitcnt lgkmcnt(0)
    s_barrier
    ds_read_b128 v[8:11], v1 offset:{STG}
    ds_read_b128 v[12:15], v1 offset:{STG+12800}
    ds_read_b128 v[16:19], v1 offset:{STG+25600}
    s_add_u32 s46, s44, 12800
    s_add_u32 s47, s44, 25600
    s_waitcnt lgkmcnt(2)
    buffer_store_dwordx4 v[8:11], v1, s[{S_WS}:{S_WS+3}], s44 offen {stf}
    s_waitcnt lgkmcnt(1)
    buffer_store_dwordx4 v[12:15], v1, s[{S_WS}:{S_WS+3}], s46 offen {stf}
    s_waitcnt lgkmcnt(0)
    buffer_store_dwordx4 v[16:19], v1, s[{S_WS}:{S_WS+3}], s47 offen {stf}
    s_endpgm
    """)
    S_W = 48
    a(f"""
    L1_prep:
    s_load_dwordx4 s[4:7], s[0:1], 32
    s_load_dwordx2 s[8:9], s[0:1], 48
    v_lshrrev_b32 v1, 6, v0
    s_sub_u32 s3, s2, {NCH}
    s_mul_i32 s3, s3, 13
    v_readfirstlane_b32 s10, v1
    s_waitcnt lgkmcnt(0)
    buffer_load_dword v7, v3, s[{S_X}:{S_X+3}], 0 offen
    s_add_u32 s10, s10, s3
    s_cmp_ge_u32 s10, 34
    s_cbranch_scc1 L1_end
    v_and_b32 v1, 31, v0
    v_bfe_u32 v2, v0, 5, 1
    v_lshlrev_b32 v4, 1, v1
    s_and_b32 s11, s10, 1
    s_lshl_b32 s11, s11, 6
    v_add_u32 v4, s11, v4
    v_and_b32 v5, 63, v0
    v_lshlrev_b32 v5, 4, v5
    s_lshl_b32 s15, s10, 10
    s_add_u32 s15, s15, {WS_FRAG}
    s_mov_b32 s{S_W}, s8
    s_mov_b32 s{S_W+1}, s9
    s_mov_b32 s{S_W+2}, {132*128}
    s_mov_b32 s{S_W+3}, 0x20000
    s_mov_b32 s12, {NLOG2E}
    s_lshr_b32 s13, s10, 1
    s_cmp_eq_u32 s13, 8
    s_cbranch_scc1 L1_prep_e
    s_add_u32 s14, s13, 4
    s_cmp_lt_u32 s10, 8
    s_cbranch_scc1 L1_prep_go
    s_mov_b32 s12, 1.0
    s_sub_u32 s14, s13, 9
    s_cmp_lt_u32 s10, 18
    s_cbranch_scc0 L1_prep_2
    s_mov_b32 s{S_W}, s6
    s_mov_b32 s{S_W+1}, s7
    s_mov_b32 s{S_W+2}, {64*128}
    s_sub_u32 s14, s13, 4
    s_branch L1_prep_go
    L1_prep_2:
    s_cmp_lt_u32 s10, 26
    s_cbranch_scc1 L1_prep_go
    s_mov_b32 s{S_W}, s4
    s_mov_b32 s{S_W+1}, s5
    s_mov_b32 s{S_W+2}, {64*128}
    s_sub_u32 s14, s13, 13
    L1_prep_go:
    s_lshl_b32 s14, s14, 11
    v_lshl_add_u32 v4, v2, 10, v4
    """)
    for i in range(8):
        a(f"buffer_load_ushort v{8+i}, v4, s[{S_W}:{S_W+3}], s14 offen offset:{128*i}")
    a("s_waitcnt vmcnt(0)")
    for i in range(8):
        a(f"v_lshlrev_b32 v{8+i}, 16, v{8+i}")
        a(f"v_mul_f32 v{8+i}, s12, v{8+i}")
    for i in range(4):
        a(f"v_cvt_pk_bf16_f32 v{16+i}, v{8+2*i}, v{9+2*i}")
    a(f"""
    buffer_store_dwordx4 v[16:19], v5, s[{S_WS}:{S_WS+3}], s15 offen
    s_endpgm
    L1_prep_e:
    s_mov_b32 s14, {128*128}
    """)
    for i in range(4):
        a(f"buffer_load_ushort v{8+i}, v4, s[{S_W}:{S_W+3}], s14 offen offset:{128*i}")
    a("v_cmp_eq_u32 vcc, 1, v2")
    a("s_waitcnt vmcnt(0)")
    for i in range(4):
        a(f"v_lshlrev_b32 v{8+i}, 16, v{8+i}")
        a(f"v_mul_f32 v{8+i}, s12, v{8+i}")
        a(f"v_and_b32 v{12+i}, 0xffff0000, v{8+i}")
        a(f"v_sub_f32 v{8+i}, v{8+i}, v{12+i}")
        a(f"v_cndmask_b32 v{8+i}, v{12+i}, v{8+i}, vcc")
    a(f"""
    v_cvt_pk_bf16_f32 v16, v8, v9
    v_cvt_pk_bf16_f32 v17, v10, v11
    v_mov_b32 v18, 0
    v_mov_b32 v19, 0
    buffer_store_dwordx4 v[16:19], v5, s[{S_WS}:{S_WS+3}], s15 offen
    L1_end:
    s_endpgm
    """)
    return a.text(), 48, 64, STG + RECB

def gen_main(opt):
    a = Asm()
    PT, ACC, CNT = 0, 16384, 32768
    FLG = CNT + 256
    CAP = 4096
    META = CNT + 512
    EA = META + CAP * 4
    STG = EA + CAP * 8
    STGW = 4160
    LDS = STG + 8 * STGW
    FRG = STG
    XR = STG + 18 * 1024
    assert XR + 8192 <= LDS and EA < 65536
    FILL = (49 << 24) | 0xFFFF80
    S_X, S_XG, S_WS, S_OFF, S_OUT = 4, 8, 12, 16, 20
    sW, sBETA, sBASE, sR, sSAFE, sFIRST, sMORE, sN, sT = 24, 25, 26, 27, 28, 29, 30, 31, 32
    sSO = 33
    sMSK24, sPERM, sTMP, sTMP2, sXTRA, sSTG = 37, 38, 39, 40, 41, 42
    sM = 44
    vT = 0
    WB, WV, WE = 4, 36, 68
    A, AE = 76, 92
    Z0, H0, Z1, H1 = 96, 112, 128, 144
    M4 = 160
    SM = 164
    ACA, ACB = 166, 168
    DD = 170
    RR = 172
    PM4, PSM, PEA, RA0, RA1, CDMA, CJ4, DMAX = 174, 175, 176, 177, 178, 179, 180, 181
    vL, vONE = 182, 183
    REC = 96
    OFFV, LIM, ADR = 184, 188, 192
    PB, PA, PD = 196, 212, 228
    T0, T1, T2, T3 = 244, 245, 246, 247
    NV = 248

    a(f"""
    s_cmp_ge_u32 s2, 256
    s_cbranch_scc1 L2_end
    s_load_dwordx2 s[{S_WS}:{S_WS+1}], s[0:1], 72
    s_load_dwordx2 s[{S_X}:{S_X+1}], s[0:1], 0
    s_load_dwordx2 s[{S_OUT}:{S_OUT+1}], s[0:1], 56
    s_mov_b32 s{S_X+2}, {N*128}
    s_mov_b32 s{S_X+3}, 0x20000
    s_mov_b32 s{S_XG+2}, {N*128+3120}
    s_mov_b32 s{S_XG+3}, 0x20000
    s_mov_b32 s{S_WS+2}, {WS_SIZE}
    s_mov_b32 s{S_WS+3}, 0x20000
    s_mov_b32 s{S_OFF+2}, {NCH*1024}
    s_mov_b32 s{S_OFF+3}, 0x20000
    s_mov_b32 s{S_OUT+2}, {N*128}
    s_mov_b32 s{S_OUT+3}, 0x20000
    v_lshrrev_b32 v1, 6, v0
    v_and_b32 v{vL}, 63, v0
    v_readfirstlane_b32 s{sW}, v1
    s_and_b32 s{sBETA}, s2, 7
    s_lshl_b32 s{sBETA}, s{sBETA}, 5
    s_lshr_b32 s3, s2, 3
    s_add_u32 s{sBETA}, s{sBETA}, s3
    s_mov_b32 s{sSAFE}, {1 if opt.get("force_safe") else 0}
    s_mov_b32 s{sSO}, 3120
    s_mov_b32 s{sSO+1}, 2080
    s_mov_b32 s{sSO+2}, 1040
    s_mov_b32 s{sSO+3}, 0
    s_mov_b32 s{sMSK24}, 0xffffff
    s_mov_b32 s{sPERM}, 0x0c0c0700
    s_mul_i32 s{sSTG}, s{sW}, {STGW}
    s_add_u32 s{sSTG}, s{sSTG}, {STG}
    v_mov_b32 v{vONE}, 4
    v_mov_b32 v1, 0
    v_mov_b32 v2, {FLG+4}
    ds_write_b32 v2, v1
    """)
    a(f"""
    v_and_b32 v1, 31, v{vL}
    v_lshrrev_b32 v2, 5, v{vL}
    v_lshlrev_b32 v{CJ4}, 2, v1
    v_and_b32 v{T0}, 7, v{vL}
    v_lshlrev_b32 v{T1}, 2, v2
    v_xor_b32 v{T0}, v{T0}, v{T1}
    v_lshlrev_b32 v{CDMA}, 4, v{T0}
    v_and_b32 v{T0}, 3, v1
    v_mul_u32_u24 v{RA0}, 1040, v{T0}
    v_lshrrev_b32 v{T1}, 4, v1
    v_bfe_u32 v{T2}, v1, 2, 1
    v_bfe_u32 v{T3}, v1, 3, 1
    v_lshl_add_u32 v3, v{T1}, 1, v{T2}
    v_lshl_add_u32 v3, v3, 1, v{T3}
    v_lshl_add_u32 v{RA0}, v3, 7, v{RA0}
    v_lshl_add_u32 v{RA0}, v2, 4, v{RA0}
    v_add_u32 v{RA0}, s{sSTG}, v{RA0}
    v_lshlrev_b32 v{RA1}, 6, v{T1}
    v_xor_b32 v{RA1}, 64, v{RA1}
    v_add_u32 v{RA1}, v{RA0}, v{RA1}
    v_lshl_add_u32 v{RA0}, v{T1}, 6, v{RA0}
    v_cmp_eq_u32 vcc, v{T2}, v2
    v_mov_b32 v{T3}, 0x3f803f80
    s_nop 0
    v_cndmask_b32 v{T3}, 0, v{T3}, vcc
    v_cmp_eq_u32 vcc, 0, v{T1}
    s_nop 1
    v_cndmask_b32 v{AE+2}, 0, v{T3}, vcc
    v_cndmask_b32 v{AE+3}, v{T3}, 0, vcc
    s_waitcnt lgkmcnt(0)
    s_sub_u32 s{S_XG}, s{S_X}, 3120
    s_subb_u32 s{S_XG+1}, s{S_X+1}, 0
    s_add_u32 s{S_OFF}, s{S_WS}, {WS_OFF}
    s_addc_u32 s{S_OFF+1}, s{S_WS+1}, 0
    L2_start:
    s_mov_b32 s{sBASE}, 0
    s_mov_b32 s{sR}, 480
    s_mov_b32 s{sFIRST}, 1
    v_mov_b32 v{DMAX}, 0
    L2_pass:
    """)
    a(f"""
    v_lshrrev_b32 v1, 3, v0
    v_lshlrev_b32 v2, 12, v1
    s_lshl_b32 s3, s{sBETA}, 2
    """)
    for i in range(4):
        a(f"buffer_load_dword v{OFFV+i}, v2, s[{S_OFF}:{S_OFF+3}], s3 offen offset:{1024*i}")
    a(f"""
    s_cmp_eq_u32 s{sFIRST}, 0
    s_cbranch_scc1 L2_nofirst1
    """)
    a(f"""
    v_lshlrev_b32 v2, 15, v1
    v_bfe_u32 v3, v0, 4, 3
    v_and_b32 v{T0}, 7, v0
    v_xor_b32 v3, v3, v{T0}
    v_lshl_add_u32 v2, v3, 4, v2
    s_lshl_b32 s3, s{sBETA}, 7
    v_add_u32 v2, s3, v2
    s_lshl_b32 s{sTMP}, s{sW}, 10
    s_add_u32 m0, s{sTMP}, {XR}
    v_lshlrev_b32 v3, 4, v{vL}
    buffer_load_dwordx4 v2, s[{S_X}:{S_X+3}], 0 offen lds
    s_add_u32 m0, s{sTMP}, {FRG}
    s_add_u32 s3, s{sTMP}, {WS_FRAG}
    buffer_load_dwordx4 v3, s[{S_WS}:{S_WS+3}], s3 offen lds
    s_add_u32 m0, s{sTMP}, {FRG+8192}
    s_add_u32 s3, s{sTMP}, {WS_FRAG+8192}
    buffer_load_dwordx4 v3, s[{S_WS}:{S_WS+3}], s3 offen lds
    s_and_b32 s{sTMP}, s{sTMP}, 1024
    s_add_u32 m0, s{sTMP}, {FRG+16384}
    s_add_u32 s3, s{sTMP}, {WS_FRAG+16384}
    buffer_load_dwordx4 v3, s[{S_WS}:{S_WS+3}], s3 offen lds
    s_lshr_b32 s3, s{sW}, 2
    s_lshl_b32 s3, s3, 3
    s_bfe_u32 s{sTMP}, s{sW}, 0x10001
    s_add_u32 s3, s3, s{sTMP}
    s_lshl_b32 s3, s3, 10
    s_add_u32 s3, s3, {WS_FRAG+18*1024}
    s_add_u32 s{sTMP}, s3, 4096
    buffer_load_dwordx4 v[{PB}:{PB+3}], v3, s[{S_WS}:{S_WS+3}], s3 offen
    buffer_load_dwordx4 v[{PB+4}:{PB+7}], v3, s[{S_WS}:{S_WS+3}], s3 offen offset:2048
    buffer_load_dwordx4 v[{PB+8}:{PB+11}], v3, s[{S_WS}:{S_WS+3}], s{sTMP} offen
    buffer_load_dwordx4 v[{PB+12}:{PB+15}], v3, s[{S_WS}:{S_WS+3}], s{sTMP} offen offset:2048
    L2_nofirst1:
    """)
    a(f"""
    v_mov_b32 v{T0}, 0
    v_mov_b32 v{T1}, 0
    v_mov_b32 v{T2}, 0
    v_mov_b32 v{T3}, 0
    v_lshlrev_b32 v2, 2, v{vL}
    ds_write_b32 v2, v{T0} offset:{CNT}
    v_mov_b32 v2, {FLG}
    ds_write_b32 v2, v{T0}
    v_lshlrev_b32 v2, 4, v0
    v_add_u32 v3, {EA}, v2
    """)
    for i in range(CAP * 8 // 8192):
        a(f"ds_write_b128 v3, v[{T0}:{T3}] offset:{8192*i}")
    a(f"""
    v_mov_b32 v{PD}, {FILL}
    v_mov_b32 v{PD+1}, {FILL}
    v_mov_b32 v{PD+2}, {FILL}
    v_mov_b32 v{PD+3}, {FILL}
    """)
    for i in range(CAP * 4 // 8192):
        a(f"ds_write_b128 v2, v[{PD}:{PD+3}] offset:{META+8192*i}")
    a(f"""
    v_and_b32 v2, 7, v0
    v_mul_u32_u24 v2, 12, v2
    v_mul_u32_u24 v3, {4*RECB}, v1
    v_add3_u32 v3, v3, v2, s{sBASE}
    v_mov_b32 v{T3}, 0x40000000
    s_add_u32 s{sTMP2}, s{sBASE}, s{sR}
    s_cmp_eq_u32 s{sFIRST}, 0
    s_cbranch_scc1 L2_nofirst2
    s_waitcnt vmcnt(8)
    s_branch L2_j2
    L2_nofirst2:
    s_waitcnt vmcnt(0)
    L2_j2:
    """)
    for i in range(4):
        a(f"""
        v_and_b32 v{ADR+i}, 0xffff, v{OFFV+i}
        v_lshrrev_b32 v{OFFV+i}, 16, v{OFFV+i}
        v_add_u32 v{ADR+i}, v3, v{ADR+i}
        v_subrev_u32 v{LIM+i}, s{sBASE}, v{OFFV+i}
        v_min_i32 v{LIM+i}, s{sR}, v{LIM+i}
        v_sub_u32 v{LIM+i}, v{LIM+i}, v2
        """)
        if i < 3: a(f"v_add_u32 v3, {RECB}, v3")
    def rec_load(rho, i):
        n = rho * 4 + i
        a(f"s_movk_i32 s3, {96*rho}") if i == 0 else None
        a(f"v_cmp_lt_i32 s[{sM+2*n}:{sM+2*n+1}], s3, v{LIM+i}")
        a("s_nop 1")
        a(f"v_cndmask_b32 v{REC+4*n+3}, v{T3}, v{ADR+i}, s[{sM+2*n}:{sM+2*n+1}]")
        a(f"buffer_load_dwordx3 v[{REC+4*n}:{REC+4*n+2}], v{REC+4*n+3}, s[{S_WS}:{S_WS+3}], 0 offen offset:{96*rho}")
    for rho in range(3):
        for i in range(4): rec_load(rho, i)
    a(f"""
    v_max3_i32 v{T0}, v{LIM}, v{LIM+1}, v{LIM+2}
    v_max_i32 v{T0}, v{T0}, v{LIM+3}
    v_cmp_lt_i32 vcc, 288, v{T0}
    s_mov_b32 s{sXTRA}, 0
    s_cbranch_vccz L2_noxtra1
    s_mov_b32 s{sXTRA}, 1
    """)
    for rho in range(3, 5):
        for i in range(4): rec_load(rho, i)
    a(f"""
    L2_noxtra1:
    v_max3_u32 v{T0}, v{OFFV}, v{OFFV+1}, v{OFFV+2}
    v_max_u32 v{T0}, v{T0}, v{OFFV+3}
    v_cmp_lt_u32 vcc, s{sTMP2}, v{T0}
    s_waitcnt vmcnt(12) lgkmcnt(0)
    s_barrier
    s_cbranch_vccz L2_nomore
    v_mov_b32 v2, {FLG}
    ds_write_b32 v2, v{vONE}
    L2_nomore:
    s_cmp_eq_u32 s{sFIRST}, 0
    s_cbranch_scc1 L2_nofirst3
    s_mov_b32 s{sFIRST}, 0
    """)
    a(f"""
    v_and_b32 v1, 31, v{vL}
    v_lshrrev_b32 v2, 5, v{vL}
    s_and_b32 s3, s{sW}, 1
    s_lshl_b32 s{sTMP}, s3, 12
    s_add_u32 s{sTMP}, s{sTMP}, {XR}
    v_lshlrev_b32 v3, 7, v1
    v_add_u32 v3, s{sTMP}, v3
    v_bfe_u32 v{T0}, v1, 1, 3
    v_xor_b32 v{T0}, v{T0}, v2
    """)
    for s in range(4):
        a(f"v_xor_b32 v{T1}, {2*s}, v{T0}")
        a(f"v_lshl_add_u32 v{T1}, v{T1}, 4, v3")
        a(f"ds_read_b128 v[{PA+4*s}:{PA+4*s+3}], v{T1}")
    a(f"v_lshlrev_b32 v3, 4, v{vL}")
    a(f"v_add_u32 v3, {FRG}, v3")
    for f in range(8):
        a(f"ds_read_b128 v[{WB+4*f}:{WB+4*f+3}], v3 offset:{1024*f}")
    for s in range(4):
        a(f"s_waitcnt lgkmcnt({3-s+8})")
        a(f"v_mfma_f32_32x32x16_bf16 v[{PD}:{PD+15}], v[{PA+4*s}:{PA+4*s+3}], v[{PB+4*s}:{PB+4*s+3}], " + ("0" if s == 0 else f"v[{PD}:{PD+15}]"))
    for f in range(8, 18):
        a(f"ds_read_b128 v[{WB+4*f}:{WB+4*f+3}], v3 offset:{1024*f}")
    a(f"""
    s_lshl_b32 s3, s3, 13
    s_bfe_u32 s{sTMP}, s{sW}, 0x10001
    s_lshl_b32 s{sTMP}, s{sTMP}, 7
    s_add_u32 s3, s3, s{sTMP}
    s_lshr_b32 s{sTMP}, s{sW}, 2
    s_lshl_b32 s{sTMP}, s{sTMP}, 14
    s_add_u32 s3, s3, s{sTMP}
    v_lshl_add_u32 v3, v2, 10, v{CJ4}
    v_add_u32 v3, s3, v3
    s_cmp_ge_u32 s{sW}, 4
    s_nop 1
    s_cbranch_scc1 L2_nop
    s_mov_b32 s3, {NLOG2E}
    """)
    for r in range(16):
        a(f"""
        v_mul_f32 v{PD+r}, s3, v{PD+r}
        v_and_b32 v{T0}, 0xffff0000, v{PD+r}
        v_sub_f32 v{PD+r}, v{PD+r}, v{T0}
        v_cvt_pk_bf16_f32 v{PD+r}, v{T0}, v{PD+r}
        """)
    a("L2_nop:")
    for q in range(4):
        for r in (0, 2):
            a(f"ds_write2st64_b32 v3, v{PD+4*q+r}, v{PD+4*q+r+1} offset0:{8*q+r} offset1:{8*q+r+1}")
    a("L2_nofirst3:")
    def rec_count(n, wait):
        if wait is not None: a(f"s_waitcnt vmcnt({wait})")
        a(f"v_lshrrev_b32 v{REC+4*n+3}, 22, v{REC+4*n+2}")
        a(f"s_mov_b64 exec, s[{sM+2*n}:{sM+2*n+1}]")
        a(f"ds_add_rtn_u32 v{REC+4*n+3}, v{REC+4*n+3}, v{vONE} offset:{CNT}")
        a(f"s_mov_b64 exec, -1")
    for n in range(12): rec_count(n, 11 - n)
    a(f"""
    s_cmp_eq_u32 s{sXTRA}, 0
    s_cbranch_scc1 L2_noxtra2
    """)
    for n in range(12, 20): rec_count(n, None)
    a(f"""
    L2_noxtra2:
    v_lshlrev_b32 v2, 2, v{vL}
    v_mov_b32 v3, {FLG}
    s_waitcnt lgkmcnt(0)
    s_barrier
    ds_read_b32 v1, v2 offset:{CNT}
    ds_read_b32 v3, v3
    s_waitcnt lgkmcnt(0)
    v_add_u32 v1, 28, v1
    v_and_b32 v1, 0xffffffe0, v1
    v_mov_b32 v2, v1
    v_readfirstlane_b32 s{sMORE}, v3
    """)
    scan64(a, 2)
    a(f"""
    s_nop 0
    v_readlane_b32 s{sT}, v2, 63
    v_sub_u32 v1, v2, v1
    s_cmp_le_u32 s{sT}, {CAP*4}
    s_cbranch_scc1 L2_fits
    s_movk_i32 s{sR}, 180
    s_barrier
    s_branch L2_pass
    L2_fits:
    """)
    def rec_lookup(n, t):
        a(f"v_lshrrev_b32 v{t}, 22, v{REC+4*n+2}")
        a(f"ds_bpermute_b32 v{t}, v{t}, v1")
    def rec_scatter(n, t):
        a(f"v_add_u32 v{t}, v{t}, v{REC+4*n+3}")
        a(f"v_lshlrev_b32 v{REC+4*n+3}, 1, v{t}")
        a(f"s_mov_b64 exec, s[{sM+2*n}:{sM+2*n+1}]")
        a(f"ds_write_b32 v{t}, v{REC+4*n+2} offset:{META}")
        a(f"ds_write_b64 v{REC+4*n+3}, v[{REC+4*n}:{REC+4*n+1}] offset:{EA}")
        a(f"s_mov_b64 exec, -1")
    for n in range(12): rec_lookup(n, PB + n)
    a(f"""
    s_add_u32 s{sT}, s{sT}, 127
    s_lshr_b32 s{sT}, s{sT}, 7
    s_lshr_b32 s{sN}, s{sT}, 3
    s_and_b32 s3, s{sT}, 7
    s_mul_i32 s{sT}, s{sN}, s{sW}
    s_min_u32 s{sTMP}, s3, s{sW}
    s_add_u32 s{sT}, s{sT}, s{sTMP}
    s_cmp_lt_u32 s{sW}, s3
    s_addc_u32 s{sN}, s{sN}, 0
    s_waitcnt lgkmcnt(0)
    """)
    for n in range(12): rec_scatter(n, PB + n)
    a(f"""
    s_cmp_eq_u32 s{sXTRA}, 0
    s_cbranch_scc1 L2_noxtra3
    """)
    for n in range(12, 20): rec_lookup(n, PB + n)
    a("s_waitcnt lgkmcnt(0)")
    for n in range(12, 20): rec_scatter(n, PB + n)
    a(f"""
    L2_noxtra3:
    s_waitcnt lgkmcnt(0)
    s_lshl_b32 s3, s{sT}, 7
    s_add_u32 s{sTMP}, s3, {META}
    v_lshrrev_b32 v1, 3, v{vL}
    v_lshl_add_u32 v{PM4}, v1, 4, s{sTMP}
    v_lshrrev_b32 v1, 5, v{vL}
    v_lshl_add_u32 v{PSM}, v1, 5, s{sTMP}
    s_lshl_b32 s3, s3, 1
    s_add_u32 s{sTMP}, s3, {EA}
    v_and_b32 v1, 19, v{vL}
    v_bfe_u32 v2, v{vL}, 2, 1
    v_bfe_u32 v3, v{vL}, 3, 1
    v_lshl_add_u32 v1, v2, 3, v1
    v_lshl_add_u32 v1, v3, 2, v1
    v_lshl_add_u32 v{PEA}, v1, 3, s{sTMP}
    s_mov_b32 m0, s{sSTG}
    s_barrier
    s_cmp_eq_u32 s{sN}, 0
    s_cbranch_scc1 L2_done
    """)

    def rd_m4(off):   return [f"ds_read_b128 v[{M4}:{M4+3}], v{PM4} offset:{off}"]
    def rd_sm(off):   return [f"ds_read2_b32 v[{SM}:{SM+1}], v{PSM} offset0:{off//4} offset1:{off//4+16}"]
    def mk_g():       return [f"v_and_or_b32 v{M4+i}, v{M4+i}, s{sMSK24}, v{CDMA}" for i in range(4)]
    def mk_ac(ac):    return [f"v_perm_b32 v{ac+i}, v{SM+i}, v{CJ4}, s{sPERM}" for i in range(2)]
    def rd_p(ac, t):  return [f"ds_read_b32 v{WE+4*t+2+i}, v{ac+i} offset:{PT+128*t}" for i in range(2)]
    def dma():        return [f"buffer_load_dwordx4 v{M4+i}, s[{S_XG}:{S_XG+3}], s{sSO+i} offen offset:{1040*i} lds" for i in range(4)]
    def rd_a():       return [f"ds_read_b128 v[{A+4*s}:{A+4*s+3}], v{RA0 if s < 2 else RA1} offset:{32*(s&1)}" for s in range(4)]
    def rd_e(off):    return [f"ds_read_b64 v[{AE}:{AE+1}], v{PEA} offset:{off}"]
    def mfmas(t, Z, H):
        out = []
        for s in range(4):
            f = 2*s + t
            out.append(f"v_mfma_f32_32x32x16_bf16 v[{Z}:{Z+15}], v[{A+4*s}:{A+4*s+3}], v[{WB+4*f}:{WB+4*f+3}], " + ("0" if s == 0 else f"v[{Z}:{Z+15}]"))
        out.append(f"v_mfma_f32_32x32x16_bf16 v[{Z}:{Z+15}], v[{AE}:{AE+3}], v[{WE+4*t}:{WE+4*t+3}], v[{Z}:{Z+15}]")
        for s in range(4):
            f = 2*s + t
            out.append(f"v_mfma_f32_32x32x16_bf16 v[{H}:{H+15}], v[{A+4*s}:{A+4*s+3}], v[{WV+4*f}:{WV+4*f+3}], " + ("0" if s == 0 else f"v[{H}:{H+15}]"))
        return out
    def valu(Z, H, safe):
        out = []
        if not safe:
            ex = lambda i: [(f"v_exp_f32 v{Z+8*p+i}, v{Z+8*p+i}", 8) for p in range(2)]
            out += ex(0) + ex(1)
            out += [(f"v_add_f32 v{DD+p}, 1.0, v{Z+8*p}", 4) for p in range(2)]
            for i in range(1, 8):
                if i < 7: out += ex(i + 1)
                out += [(f"v_fma_f32 v{H+8*p+i}, v{H+8*p+i}, v{DD+p}, v{H+8*p+i-1}", 4) for p in range(2)]
                out += [(f"v_fmac_f32 v{DD+p}, v{DD+p}, v{Z+8*p+i}", 4) for p in range(2)]
                out += [(f"v_fmac_f32 v{H+8*p+i}, v{H+8*p+i-1}, v{Z+8*p+i}", 4) for p in range(2)]
            out += [(f"v_rcp_f32 v{RR+p}, v{DD+p}", 8) for p in range(2)]
            out += [(f"v_max3_f32 v{DMAX}, v{DMAX}, v{DD}, v{DD+1}", 4)]
            out += [(f"v_mul_f32 v{RR+p}, v{RR+p}, v{H+8*p+7}", 4) for p in range(2)]
        else:
            for i in range(16): out.append((f"v_exp_f32 v{Z+i}, v{Z+i}", 8))
            for i in range(16): out.append((f"v_add_f32 v{Z+i}, 1.0, v{Z+i}", 4))
            for i in range(16): out.append((f"v_rcp_f32 v{Z+i}, v{Z+i}", 8))
            out += [(f"v_mul_f32 v{RR+p}, v{Z+8*p}, v{H+8*p}", 4) for p in range(2)]
            for i in range(1, 8):
                out += [(f"v_fmac_f32 v{RR+p}, v{Z+8*p+i}, v{H+8*p+i}", 4) for p in range(2)]
        return out
    def ds_add(ac, t): return [f"ds_add_f32 v{ac+i}, v{RR+i} offset:{ACC+128*t}" for i in range(2)]

    def weave(vl, mf, first_at, gap, inserts):
        out = []; c = 0; k = 0; nxt = first_at
        for ins, cost in vl:
            while k < len(mf) and c >= nxt:
                if k == 0: out += inserts.get(-1, [])
                out.append(mf[k]); out += inserts.get(k, []); k += 1; nxt += gap
            out.append(ins); c += cost
        assert k == len(mf)
        return out

    def loop(tag, safe):
        gap = opt.get("gap", 26)
        for l in rd_m4(0) + rd_sm(0): a(l)
        a("s_waitcnt lgkmcnt(0)")
        for l in mk_g() + mk_ac(ACA) + dma() + rd_p(ACA, 0) + rd_p(ACA, 1) + rd_e(0) + rd_m4(128): a(l)
        a("s_waitcnt vmcnt(0)")
        for l in rd_a(): a(l)
        a("s_waitcnt lgkmcnt(0)")
        a(f"s_cmp_lt_u32 s{sN}, 2")
        a(f"s_cbranch_scc1 L2_p1{tag}")
        for l in mk_g() + dma(): a(l)
        a(f"L2_p1{tag}:")
        for l in mfmas(0, Z0, H0): a(l)
        a("s_nop 7")
        a(f"L2_loop{tag}:")
        for u in range(2):
            ac, an = (ACA, ACB) if u == 0 else (ACB, ACA)
            o = 128 * u
            for l in rd_m4(o + 256) + rd_sm(o + 128): a(l)
            ins = {3: ["s_waitcnt lgkmcnt(0)"] + mk_ac(an) + rd_p(an, 0) + mk_g(),
                   4: rd_p(an, 1) + rd_e(2 * o + 256),
                   8: ["s_waitcnt vmcnt(0)"] + rd_a()}
            for l in weave(valu(Z0, H0, safe), mfmas(1, Z1, H1), 0, gap, ins): a(l)
            for l in ds_add(ac, 0): a(l)
            pre = ["s_waitcnt lgkmcnt(2)", f"s_cmp_lt_u32 s{sN}, 3", f"s_cbranch_scc1 L2_nd{tag}{u}"] + dma() + [f"L2_nd{tag}{u}:"]
            ins = {-1: pre}
            if u == 1:
                ins[2] = [f"v_add_u32 v{PM4}, 256, v{PM4}", f"v_add_u32 v{PSM}, 256, v{PSM}", f"v_add_u32 v{PEA}, 512, v{PEA}"]
            for l in weave(valu(Z1, H1, safe), mfmas(0, Z0, H0), 32, gap, ins): a(l)
            for l in ds_add(ac, 1): a(l)
            a(f"s_sub_u32 s{sN}, s{sN}, 1")
            a(f"s_cmp_eq_u32 s{sN}, 0")
            if u == 0: a(f"s_cbranch_scc1 L2_done")
            else:      a(f"s_cbranch_scc0 L2_loop{tag}")
    a(f"s_cmp_lg_u32 s{sSAFE}, 0")
    a("s_cbranch_scc1 L2_safe")
    loop("f", False)
    a(f"""
    L2_done:
    v_cmp_lt_f32 vcc, 0x5f800000, v{DMAX}
    s_cbranch_vccz L2_okd
    v_mov_b32 v2, {FLG+4}
    ds_write_b32 v2, v{vONE}
    L2_okd:
    s_waitcnt lgkmcnt(0)
    s_barrier
    s_cmp_eq_u32 s{sMORE}, 0
    s_cbranch_scc1 L2_epi
    s_add_u32 s{sBASE}, s{sBASE}, s{sR}
    s_movk_i32 s{sR}, 480
    s_branch L2_pass
    L2_epi:
    v_lshlrev_b32 v1, 5, v0
    ds_read_b128 v[{Z1}:{Z1+3}], v1 offset:{ACC}
    ds_read_b128 v[{Z1+4}:{Z1+7}], v1 offset:{ACC+16}
    v_lshrrev_b32 v2, 3, v0
    v_lshlrev_b32 v2, 15, v2
    v_and_b32 v3, 7, v0
    v_lshl_add_u32 v2, v3, 4, v2
    s_lshl_b32 s3, s{sBETA}, 7
    v_add_u32 v2, s3, v2
    s_mov_b32 s3, {NLOG2E}
    s_waitcnt lgkmcnt(0)
    """)
    for i in range(8): a(f"v_mul_f32 v{H1+i}, s3, v{Z1+i}")
    for i in range(8): a(f"v_exp_f32 v{H1+i}, v{H1+i}")
    a(f"v_mul_f32 v{T0}, 0, v{Z1}")
    for i in range(8): a(f"v_add_f32 v{H1+i}, 1.0, v{H1+i}")
    for i in range(8): a(f"v_rcp_f32 v{H1+i}, v{H1+i}")
    for i in range(1, 8): a(f"v_fmac_f32 v{T0}, 0, v{Z1+i}")
    for i in range(8): a(f"v_mul_f32 v{H1+i}, v{H1+i}, v{Z1+i}")
    for i in range(4): a(f"v_cvt_pk_bf16_f32 v{H1+8+i}, v{H1+2*i}, v{H1+2*i+1}")
    a(f"""
    buffer_store_dwordx4 v[{H1+8}:{H1+11}], v2, s[{S_OUT}:{S_OUT+3}], 0 offen
    s_cmp_lg_u32 s{sSAFE}, 0
    s_cbranch_scc1 L2_end
    v_cmp_u_f32 vcc, v{T0}, v{T0}
    v_mov_b32 v2, {FLG+4}
    s_cbranch_vccz L2_oke
    ds_write_b32 v2, v{vONE}
    L2_oke:
    s_waitcnt lgkmcnt(0)
    s_barrier
    ds_read_b32 v1, v2
    s_waitcnt lgkmcnt(0)
    v_readfirstlane_b32 s3, v1
    s_cmp_eq_u32 s3, 0
    s_cbranch_scc1 L2_end
    s_mov_b32 s{sSAFE}, 1
    s_branch L2_start
    L2_end:
    s_endpgm
    L2_safe:
    """)
    loop("s", True)
    a("s_branch L2_done")
    return a.text(), NV, 90, LDS

HEADER = open("gather_scatter__edge_featured_mpnn_egc__graph.s.ref").read().split("; Override launch")[0]

def kd(name, nv, ns):
    return f""".amdhsa_kernel {name}
  .amdhsa_next_free_vgpr {nv}
  .amdhsa_next_free_sgpr {ns}
  .amdhsa_accum_offset {(nv+3)//4*4}
  .amdhsa_group_segment_fixed_size 0
  .amdhsa_kernarg_size 80
  .amdhsa_user_sgpr_count 2
  .amdhsa_user_sgpr_kernarg_segment_ptr 1
  .amdhsa_system_sgpr_workgroup_id_x 1
  .amdhsa_float_denorm_mode_32 3
.end_amdhsa_kernel
"""

def generate(opt):
    b1, nv1, ns1, lds1 = gen_bin(opt)
    b2, nv2, ns2, lds2 = gen_main(opt)
    K1, K2 = "egc_bin_kernel", "gather_scatter__edge_featured_mpnn_egc__graph_kernel"
    s = HEADER
    s += f"; @launch kernel={K1} grid=(256,1,1) block=(832,1,1) lds={lds1}\n"
    s += f"; @launch kernel={K2} grid=(256,1,1) block=(512,1,1) lds={lds2}\n"
    s += '.amdgcn_target "amdgcn-amd-amdhsa--gfx950"\n.text\n'
    for name, body in ((K1, b1), (K2, b2)):
        s += f".globl {name}\n.p2align 8\n.type {name},@function\n{name}:\n{body}"
    s += '.section .rodata,"a"\n.p2align 6\n' + kd(K1, nv1, ns1) + ".p2align 6\n" + kd(K2, nv2, ns2)
    return s

if __name__ == "__main__":
    opt = {}
    out = "gather_scatter__edge_featured_mpnn_egc__graph.s"
    for x in sys.argv[1:]:
        k, v = x.split("=", 1)
        if k == "out": out = v
        else:
            try: v = int(v)
            except ValueError: pass
            opt[k] = v
    open(out, "w").write(generate(opt))
    print("wrote", out)
```

```python
import sys, math

N, D, E = 12500, 64, 800000
NCH, CH = 250, 3200
RECB = CH * 12
WS_OFF = 0x00A00000
WS_FRAG = 0x00B00000
WS_SIZE = WS_FRAG + 34 * 1024
NLOG2E = 0xBFB8AA3B

class Asm:
    def __init__(self):
        self.lines = []
    def __call__(self, s):
        for l in s.split("\n"):
            l = l.strip()
            if not l: continue
            if l.endswith(":"): self.lines.append(l)
            else: self.lines.append("    " + l)
    def text(self): return "\n".join(self.lines) + "\n"

def vr(a, n=1):
    return f"v{a}" if n == 1 else f"v[{a}:{a+n-1}]"
def sr(a, n=1):
    return f"s{a}" if n == 1 else f"s[{a}:{a+n-1}]"

WS_STAMP = 0x00C00000
class Stamper:
    def __init__(self, a, on, vreg, sreg, kid):
        self.a, self.on, self.v, self.s, self.n, self.kid = a, on, vreg, sreg, 0, kid
    def __call__(self, name=""):
        if not self.on: return
        a = self.a
        a(f"s_memtime s[{self.s}:{self.s+1}]")
        a("s_waitcnt lgkmcnt(0)")
        a(f"v_writelane_b32 v{self.v}, s{self.s}, {self.n}")
        self.n += 1
    def real(self):
        if not self.on: return
        a = self.a
        a(f"s_memrealtime s[{self.s}:{self.s+1}]")
        a("s_waitcnt lgkmcnt(0)")
        a(f"v_writelane_b32 v{self.v}, s{self.s}, {self.n}")
        self.n += 1
    def flush(self, srd, vtmp):
        if not self.on: return
        a = self.a
        a("s_mov_b64 exec, -1")
        a(f"s_lshl_b32 s{self.s}, s2, 12")
        a(f"s_add_u32 s{self.s}, s{self.s}, {WS_STAMP + self.kid * (1 << 20)}")
        a(f"s_mov_b32 s{srd+2}, 0x10000000")
        a(f"v_lshlrev_b32 v{vtmp}, 2, v0")
        a(f"buffer_store_dword v{self.v}, v{vtmp}, s[{srd}:{srd+3}], s{self.s} offen")

def scan64(a, v):
    for sh in (1, 2, 4, 8):
        a("s_nop 1")
        a(f"v_add_u32_dpp v{v}, v{v}, v{v} row_shr:{sh} row_mask:0xf bank_mask:0xf bound_ctrl:1")
    a("s_nop 1")
    a(f"v_add_u32_dpp v{v}, v{v}, v{v} row_bcast:15 row_mask:0xa bank_mask:0xf")
    a("s_nop 1")
    a(f"v_add_u32_dpp v{v}, v{v}, v{v} row_bcast:31 row_mask:0xc bank_mask:0xf")

def gen_bin(opt):
    a = Asm()
    HIST, OFFS, STG = 0, 1024, 2048
    S_DST, S_SRC, S_EA, S_X, S_WS = 24, 28, 32, 36, 40
    stf = opt.get("k1_store_flags", "")
    st = Stamper(a, opt.get("stamp"), 48, 52, 0)
    a("s_cmp_ge_u32 s2, 256\ns_cbranch_scc1 L1_end")
    if opt.get("stamp"): a("v_mov_b32 v48, 0")
    st.real(); st()
    a(f"""
    s_load_dwordx2 s[{S_DST}:{S_DST+1}], s[0:1], 24
    s_load_dwordx2 s[{S_SRC}:{S_SRC+1}], s[0:1], 16
    s_load_dwordx2 s[{S_EA}:{S_EA+1}], s[0:1], 8
    s_load_dwordx2 s[{S_X}:{S_X+1}], s[0:1], 0
    s_load_dwordx2 s[{S_WS}:{S_WS+1}], s[0:1], 72
    s_mov_b32 s{S_DST+2}, {E*4}
    s_mov_b32 s{S_DST+3}, 0x20000
    s_mov_b32 s{S_SRC+2}, {E*4}
    s_mov_b32 s{S_SRC+3}, 0x20000
    s_mov_b32 s{S_EA+2}, {E*8}
    s_mov_b32 s{S_EA+3}, 0x20000
    s_mov_b32 s{S_X+2}, {N*128}
    s_mov_b32 s{S_X+3}, 0x20000
    s_mov_b32 s{S_WS+2}, {WS_SIZE}
    s_mov_b32 s{S_WS+3}, 0x20000
    s_lshr_b32 s3, s2, 3
    s_mul_i32 s3, s3, 51200
    v_lshlrev_b32 v3, 6, v0
    v_add_u32 v3, s3, v3
    s_cmp_ge_u32 s2, {NCH}
    s_cbranch_scc1 L1_prep
    s_mul_i32 s20, s2, {CH*4}
    s_mul_i32 s21, s2, {CH*8}
    s_mul_i32 s44, s2, {RECB}
    v_lshlrev_b32 v1, 4, v0
    v_lshlrev_b32 v2, 5, v0
    v_lshlrev_b32 v4, 2, v0
    v_mov_b32 v5, 0
    ds_write_b32 v4, v5
    v_mov_b32 v6, 12
    v_cmp_gt_u32 vcc, {CH//4}, v0
    s_mov_b64 s[22:23], vcc
    s_mov_b64 exec, vcc
    s_mov_b32 s45, 0x05020100
    s_waitcnt lgkmcnt(0)
    """)
    st()
    a(f"""
    buffer_load_dwordx4 v[8:11], v1, s[{S_DST}:{S_DST+3}], s20 offen
    """)
    st()
    a(f"""
    buffer_load_dwordx4 v[12:15], v1, s[{S_SRC}:{S_SRC+3}], s20 offen
    buffer_load_dwordx4 v[16:19], v2, s[{S_EA}:{S_EA+3}], s21 offen
    buffer_load_dwordx4 v[20:23], v2, s[{S_EA}:{S_EA+3}], s21 offen offset:16
    """)
    st()
    if opt.get("nowarm"): a("v_mov_b32 v3, 0x40000000")
    a(f"""
    buffer_load_dword v7, v3, s[{S_X}:{S_X+3}], 0 offen
    """)
    st()
    a("s_barrier")
    st()
    a("s_waitcnt vmcnt(4)")
    st()
    for i in range(4):
        a(f"v_and_b32 v{24+i}, 0xff, v{8+i}")
        a(f"v_lshlrev_b32 v{24+i}, 2, v{24+i}")
        a(f"ds_add_rtn_u32 v{28+i}, v{24+i}, v6 offset:{HIST}")
    a(f"""
    s_mov_b64 exec, -1
    v_and_b32 v40, 63, v0
    v_lshlrev_b32 v40, 4, v40
    s_waitcnt lgkmcnt(0)
    s_barrier
    """)
    st()
    a(f"""
    ds_read_b128 v[32:35], v40 offset:{HIST}
    s_waitcnt lgkmcnt(0)
    v_add_u32 v41, v32, v33
    v_add_u32 v42, v41, v34
    v_add_u32 v43, v42, v35
    v_mov_b32 v44, v43
    """)
    scan64(a, 44)
    a(f"""
    v_sub_u32 v36, v44, v43
    v_add_u32 v37, v36, v32
    v_add_u32 v38, v36, v41
    v_add_u32 v39, v36, v42
    ds_write_b128 v40, v[36:39] offset:{OFFS}
    v_cmp_gt_u32 vcc, 64, v0
    s_and_b64 exec, exec, vcc
    s_cbranch_execz L1_nooff
    v_lshl_or_b32 v44, v32, 16, v36
    v_lshl_or_b32 v45, v33, 16, v37
    v_lshl_or_b32 v46, v34, 16, v38
    v_lshl_or_b32 v47, v35, 16, v39
    s_lshl_b32 s3, s2, 10
    s_add_u32 s3, s3, {WS_OFF}
    s_waitcnt vmcnt(0)
    buffer_store_dwordx4 v[44:47], v40, s[{S_WS}:{S_WS+3}], s3 offen {stf}
    L1_nooff:
    s_mov_b64 exec, s[22:23]
    s_waitcnt lgkmcnt(0)
    """)
    for i in range(4):
        a(f"ds_read_b32 v{24+i}, v{24+i} offset:{OFFS}")
    st()
    a("s_waitcnt vmcnt(1)")
    st()
    for i in range(4):
        a(f"v_lshlrev_b32 v{12+i}, 7, v{12+i}")
        a(f"v_lshrrev_b32 v{8+i}, 8, v{8+i}")
        a(f"v_lshl_or_b32 v{12+i}, v{8+i}, 26, v{12+i}")
    for i in range(4):
        a(f"s_waitcnt lgkmcnt({3-i if i==0 else (3-i)+2*i})")
        a(f"v_add_u32 v{28+i}, v{28+i}, v{24+i}")
        a(f"v_add_u32 v{24+i}, {STG}, v{28+i}")
        a(f"ds_write2_b32 v{24+i}, v{16+2*i}, v{17+2*i} offset0:0 offset1:1")
        a(f"ds_write_b32 v{28+i}, v{12+i} offset:{STG+8}")
    a(f"""
    s_waitcnt lgkmcnt(0)
    s_barrier
    """)
    st()
    a(f"""
    ds_read_b128 v[8:11], v1 offset:{STG}
    ds_read_b128 v[12:15], v1 offset:{STG+12800}
    ds_read_b128 v[16:19], v1 offset:{STG+25600}
    s_add_u32 s46, s44, 12800
    s_add_u32 s47, s44, 25600
    s_waitcnt lgkmcnt(2)
    buffer_store_dwordx4 v[8:11], v1, s[{S_WS}:{S_WS+3}], s44 offen {stf}
    s_waitcnt lgkmcnt(1)
    buffer_store_dwordx4 v[12:15], v1, s[{S_WS}:{S_WS+3}], s46 offen {stf}
    s_waitcnt lgkmcnt(0)
    buffer_store_dwordx4 v[16:19], v1, s[{S_WS}:{S_WS+3}], s47 offen {stf}
    """)
    st()
    if opt.get("stamp"): a("s_waitcnt vmcnt(0)")
    st(); st.real()
    st.flush(S_WS, 1)
    a("s_endpgm")
    S_W = 48
    a(f"""
    L1_prep:
    s_load_dwordx4 s[4:7], s[0:1], 32
    s_load_dwordx2 s[8:9], s[0:1], 48
    v_lshrrev_b32 v1, 6, v0
    s_sub_u32 s3, s2, {NCH}
    s_mul_i32 s3, s3, 13
    v_readfirstlane_b32 s10, v1
    s_waitcnt lgkmcnt(0)
    buffer_load_dword v7, v3, s[{S_X}:{S_X+3}], 0 offen
    s_add_u32 s10, s10, s3
    s_cmp_ge_u32 s10, 34
    s_cbranch_scc1 L1_end
    v_and_b32 v1, 31, v0
    v_bfe_u32 v2, v0, 5, 1
    v_lshlrev_b32 v4, 1, v1
    s_and_b32 s11, s10, 1
    s_lshl_b32 s11, s11, 6
    v_add_u32 v4, s11, v4
    v_and_b32 v5, 63, v0
    v_lshlrev_b32 v5, 4, v5
    s_lshl_b32 s15, s10, 10
    s_add_u32 s15, s15, {WS_FRAG}
    s_mov_b32 s{S_W}, s8
    s_mov_b32 s{S_W+1}, s9
    s_mov_b32 s{S_W+2}, {132*128}
    s_mov_b32 s{S_W+3}, 0x20000
    s_mov_b32 s12, {NLOG2E}
    s_lshr_b32 s13, s10, 1
    s_cmp_eq_u32 s13, 8
    s_cbranch_scc1 L1_prep_e
    s_add_u32 s14, s13, 4
    s_cmp_lt_u32 s10, 8
    s_cbranch_scc1 L1_prep_go
    s_mov_b32 s12, 1.0
    s_sub_u32 s14, s13, 9
    s_cmp_lt_u32 s10, 18
    s_cbranch_scc0 L1_prep_2
    s_mov_b32 s{S_W}, s6
    s_mov_b32 s{S_W+1}, s7
    s_mov_b32 s{S_W+2}, {64*128}
    s_sub_u32 s14, s13, 4
    s_branch L1_prep_go
    L1_prep_2:
    s_cmp_lt_u32 s10, 26
    s_cbranch_scc1 L1_prep_go
    s_mov_b32 s{S_W}, s4
    s_mov_b32 s{S_W+1}, s5
    s_mov_b32 s{S_W+2}, {64*128}
    s_sub_u32 s14, s13, 13
    L1_prep_go:
    s_lshl_b32 s14, s14, 11
    v_lshl_add_u32 v4, v2, 10, v4
    """)
    for i in range(8):
        a(f"buffer_load_ushort v{8+i}, v4, s[{S_W}:{S_W+3}], s14 offen offset:{128*i}")
    a("s_waitcnt vmcnt(0)")
    for i in range(8):
        a(f"v_lshlrev_b32 v{8+i}, 16, v{8+i}")
        a(f"v_mul_f32 v{8+i}, s12, v{8+i}")
    for i in range(4):
        a(f"v_cvt_pk_bf16_f32 v{16+i}, v{8+2*i}, v{9+2*i}")
    a(f"""
    buffer_store_dwordx4 v[16:19], v5, s[{S_WS}:{S_WS+3}], s15 offen
    s_endpgm
    L1_prep_e:
    s_mov_b32 s14, {128*128}
    """)
    for i in range(4):
        a(f"buffer_load_ushort v{8+i}, v4, s[{S_W}:{S_W+3}], s14 offen offset:{128*i}")
    a("v_cmp_eq_u32 vcc, 1, v2")
    a("s_waitcnt vmcnt(0)")
    for i in range(4):
        a(f"v_lshlrev_b32 v{8+i}, 16, v{8+i}")
        a(f"v_mul_f32 v{8+i}, s12, v{8+i}")
        a(f"v_and_b32 v{12+i}, 0xffff0000, v{8+i}")
        a(f"v_sub_f32 v{8+i}, v{8+i}, v{12+i}")
        a(f"v_cndmask_b32 v{8+i}, v{12+i}, v{8+i}, vcc")
    a(f"""
    v_cvt_pk_bf16_f32 v16, v8, v9
    v_cvt_pk_bf16_f32 v17, v10, v11
    v_mov_b32 v18, 0
    v_mov_b32 v19, 0
    buffer_store_dwordx4 v[16:19], v5, s[{S_WS}:{S_WS+3}], s15 offen
    L1_end:
    s_endpgm
    """)
    return a.text(), 52, 64, STG + RECB

def gen_main(opt):
    a = Asm()
    CNT = 0
    FLG = CNT + 256
    CAP = 4096
    META = CNT + 512
    EA = META + CAP * 4
    STG = EA + CAP * 8
    STGW = 4160
    TAB = STG + 8 * STGW
    LDS = TAB + 50 * 1024
    TABI = TAB - 0x10000
    FRG = STG
    XR = STG + 18 * 1024
    assert XR + 8192 <= TAB and EA < 65536 and 0 <= TABI < 60000
    FILL = (49 << 26) | 0xFFFF80
    S_X, S_XG, S_WS, S_OFF, S_OUT = 4, 8, 12, 16, 20
    sW, sBETA, sBASE, sR, sSAFE, sFIRST, sMORE, sN, sT = 24, 25, 26, 27, 28, 29, 30, 31, 32
    sSO = 33
    sMSK24, sPERM, sTMP, sTMP2, sXTRA, sSTG = 37, 38, 39, 40, 41, 42
    sM = 44
    vT = 0
    WB, WV, WE = 4, 36, 68
    A, AE = 76, 92
    Z0, H0, Z1, H1 = 96, 112, 128, 144
    M4 = 160
    SM = 164
    ACA, ACB = 166, 168
    DD = 170
    RR = 172
    PM4, PSM, PEA, RA0, RA1, CDMA, CJ4, DMAX = 174, 175, 176, 177, 178, 179, 180, 181
    vL, vONE = 182, 183
    REC = 96
    OFFV, LIM, ADR = 184, 188, 192
    R64 = 184
    PB, PA, PD = 196, 212, 228
    T0, T1, T2, T3 = 244, 245, 246, 247
    NV = 252
    st = Stamper(a, opt.get("stamp"), 248, 84, 1)
    a("s_cmp_ge_u32 s2, 256\ns_cbranch_scc1 L2_end")
    if opt.get("stamp"): a("v_mov_b32 v248, 0")
    st.real(); st()
    a(f"""
    s_load_dwordx2 s[{S_WS}:{S_WS+1}], s[0:1], 72
    s_load_dwordx2 s[{S_X}:{S_X+1}], s[0:1], 0
    s_load_dwordx2 s[{S_OUT}:{S_OUT+1}], s[0:1], 56
    s_mov_b32 s{S_X+2}, {N*128}
    s_mov_b32 s{S_X+3}, 0x20000
    s_mov_b32 s{S_XG+2}, {N*128+3120}
    s_mov_b32 s{S_XG+3}, 0x20000
    s_mov_b32 s{S_WS+2}, {WS_SIZE}
    s_mov_b32 s{S_WS+3}, 0x20000
    s_mov_b32 s{S_OFF+2}, {NCH*1024}
    s_mov_b32 s{S_OFF+3}, 0x20000
    s_mov_b32 s{S_OUT+2}, {N*128}
    s_mov_b32 s{S_OUT+3}, 0x20000
    v_lshrrev_b32 v1, 6, v0
    v_and_b32 v{vL}, 63, v0
    v_readfirstlane_b32 s{sW}, v1
    s_and_b32 s{sBETA}, s2, 7
    s_lshl_b32 s{sBETA}, s{sBETA}, 5
    s_lshr_b32 s3, s2, 3
    s_add_u32 s{sBETA}, s{sBETA}, s3
    s_mov_b32 s{sSAFE}, {1 if opt.get("force_safe") else 0}
    s_mov_b32 s{sSO}, 3120
    s_mov_b32 s{sSO+1}, 2080
    s_mov_b32 s{sSO+2}, 1040
    s_mov_b32 s{sSO+3}, 0
    s_mov_b32 s{sMSK24}, 0xffffff
    s_mov_b32 s{sPERM}, 0x0c020700
    s_mul_i32 s{sSTG}, s{sW}, {STGW}
    s_add_u32 s{sSTG}, s{sSTG}, {STG}
    v_mov_b32 v{vONE}, 4
    v_mov_b32 v1, 0
    v_mov_b32 v2, {FLG+4}
    ds_write_b32 v2, v1
    """)
    a(f"""
    v_and_b32 v1, 31, v{vL}
    v_lshrrev_b32 v2, 5, v{vL}
    v_lshlrev_b32 v{CJ4}, 3, v1
    v_or_b32 v{CJ4}, 0x10000, v{CJ4}
    v_and_b32 v{T0}, 7, v{vL}
    v_lshlrev_b32 v{T1}, 2, v2
    v_xor_b32 v{T0}, v{T0}, v{T1}
    v_lshlrev_b32 v{CDMA}, 4, v{T0}
    v_and_b32 v{T0}, 3, v1
    v_mul_u32_u24 v{RA0}, 1040, v{T0}
    v_lshrrev_b32 v{T1}, 4, v1
    v_bfe_u32 v{T2}, v1, 2, 1
    v_bfe_u32 v{T3}, v1, 3, 1
    v_lshl_add_u32 v3, v{T1}, 1, v{T2}
    v_lshl_add_u32 v3, v3, 1, v{T3}
    v_lshl_add_u32 v{RA0}, v3, 7, v{RA0}
    v_lshl_add_u32 v{RA0}, v2, 4, v{RA0}
    v_add_u32 v{RA0}, s{sSTG}, v{RA0}
    v_lshlrev_b32 v{RA1}, 6, v{T1}
    v_xor_b32 v{RA1}, 64, v{RA1}
    v_add_u32 v{RA1}, v{RA0}, v{RA1}
    v_lshl_add_u32 v{RA0}, v{T1}, 6, v{RA0}
    v_cmp_eq_u32 vcc, v{T2}, v2
    v_mov_b32 v{T3}, 0x3f803f80
    s_nop 0
    v_cndmask_b32 v{T3}, 0, v{T3}, vcc
    v_cmp_eq_u32 vcc, 0, v{T1}
    s_nop 1
    v_cndmask_b32 v{AE+2}, 0, v{T3}, vcc
    v_cndmask_b32 v{AE+3}, v{T3}, 0, vcc
    s_waitcnt lgkmcnt(0)
    s_sub_u32 s{S_XG}, s{S_X}, 3120
    s_subb_u32 s{S_XG+1}, s{S_X+1}, 0
    s_add_u32 s{S_OFF}, s{S_WS}, {WS_OFF}
    s_addc_u32 s{S_OFF+1}, s{S_WS+1}, 0
    L2_start:
    s_mov_b32 s{sBASE}, 0
    s_mov_b32 s{sR}, 480
    s_mov_b32 s{sFIRST}, 1
    v_mov_b32 v{DMAX}, 0
    L2_pass:
    """)
    st()
    a(f"""
    v_lshrrev_b32 v1, 3, v0
    v_lshlrev_b32 v2, 12, v1
    s_lshl_b32 s3, s{sBETA}, 2
    """)
    for i in range(4):
        a(f"buffer_load_dword v{OFFV+i}, v2, s[{S_OFF}:{S_OFF+3}], s3 offen offset:{1024*i}")
    a(f"""
    s_cmp_eq_u32 s{sFIRST}, 0
    s_cbranch_scc1 L2_nofirst1
    """)
    a(f"""
    v_lshlrev_b32 v2, 15, v1
    v_bfe_u32 v3, v0, 4, 3
    v_and_b32 v{T0}, 7, v0
    v_xor_b32 v3, v3, v{T0}
    v_lshl_add_u32 v2, v3, 4, v2
    s_lshl_b32 s3, s{sBETA}, 7
    v_add_u32 v2, s3, v2
    s_lshl_b32 s{sTMP}, s{sW}, 10
    s_add_u32 m0, s{sTMP}, {XR}
    v_lshlrev_b32 v3, 4, v{vL}
    buffer_load_dwordx4 v2, s[{S_X}:{S_X+3}], 0 offen lds
    s_add_u32 m0, s{sTMP}, {FRG}
    s_add_u32 s3, s{sTMP}, {WS_FRAG}
    buffer_load_dwordx4 v3, s[{S_WS}:{S_WS+3}], s3 offen lds
    s_add_u32 m0, s{sTMP}, {FRG+8192}
    s_add_u32 s3, s{sTMP}, {WS_FRAG+8192}
    buffer_load_dwordx4 v3, s[{S_WS}:{S_WS+3}], s3 offen lds
    s_and_b32 s{sTMP}, s{sTMP}, 1024
    s_add_u32 m0, s{sTMP}, {FRG+16384}
    s_add_u32 s3, s{sTMP}, {WS_FRAG+16384}
    buffer_load_dwordx4 v3, s[{S_WS}:{S_WS+3}], s3 offen lds
    s_lshr_b32 s3, s{sW}, 2
    s_lshl_b32 s3, s3, 3
    s_bfe_u32 s{sTMP}, s{sW}, 0x10001
    s_add_u32 s3, s3, s{sTMP}
    s_lshl_b32 s3, s3, 10
    s_add_u32 s3, s3, {WS_FRAG+18*1024}
    s_add_u32 s{sTMP}, s3, 4096
    buffer_load_dwordx4 v[{PB}:{PB+3}], v3, s[{S_WS}:{S_WS+3}], s3 offen
    buffer_load_dwordx4 v[{PB+4}:{PB+7}], v3, s[{S_WS}:{S_WS+3}], s3 offen offset:2048
    buffer_load_dwordx4 v[{PB+8}:{PB+11}], v3, s[{S_WS}:{S_WS+3}], s{sTMP} offen
    buffer_load_dwordx4 v[{PB+12}:{PB+15}], v3, s[{S_WS}:{S_WS+3}], s{sTMP} offen offset:2048
    L2_nofirst1:
    """)
    a(f"""
    v_mov_b32 v{T0}, 0
    v_mov_b32 v{T1}, 0
    v_mov_b32 v{T2}, 0
    v_mov_b32 v{T3}, 0
    v_lshlrev_b32 v2, 2, v{vL}
    ds_write_b32 v2, v{T0} offset:{CNT}
    v_mov_b32 v2, {FLG}
    ds_write_b32 v2, v{T0}
    v_lshlrev_b32 v2, 4, v0
    v_add_u32 v3, {EA}, v2
    """)
    for i in range(CAP * 8 // 8192):
        a(f"ds_write_b128 v3, v[{T0}:{T3}] offset:{8192*i}")
    a(f"""
    v_mov_b32 v{PD}, {FILL}
    v_mov_b32 v{PD+1}, {FILL}
    v_mov_b32 v{PD+2}, {FILL}
    v_mov_b32 v{PD+3}, {FILL}
    """)
    for i in range(CAP * 4 // 8192):
        a(f"ds_write_b128 v2, v[{PD}:{PD+3}] offset:{META+8192*i}")
    a(f"""
    v_and_b32 v2, 7, v0
    v_mul_u32_u24 v2, 12, v2
    v_mul_u32_u24 v3, {4*RECB}, v1
    v_add3_u32 v3, v3, v2, s{sBASE}
    v_mov_b32 v{T3}, 0x40000000
    s_add_u32 s{sTMP2}, s{sBASE}, s{sR}
    s_cmp_eq_u32 s{sFIRST}, 0
    s_cbranch_scc1 L2_nofirst2
    s_waitcnt vmcnt(8)
    s_branch L2_j2
    L2_nofirst2:
    s_waitcnt vmcnt(0)
    L2_j2:
    """)
    st()
    for i in range(4):
        a(f"""
        v_and_b32 v{ADR+i}, 0xffff, v{OFFV+i}
        v_lshrrev_b32 v{OFFV+i}, 16, v{OFFV+i}
        v_add_u32 v{ADR+i}, v3, v{ADR+i}
        v_subrev_u32 v{LIM+i}, s{sBASE}, v{OFFV+i}
        v_min_i32 v{LIM+i}, s{sR}, v{LIM+i}
        v_sub_u32 v{LIM+i}, v{LIM+i}, v2
        """)
        if i < 3: a(f"v_add_u32 v3, {RECB}, v3")
    def rec_load(rho, i):
        n = rho * 4 + i
        a(f"s_movk_i32 s3, {96*rho}") if i == 0 else None
        a(f"v_cmp_lt_i32 s[{sM+2*n}:{sM+2*n+1}], s3, v{LIM+i}")
        a("s_nop 1")
        a(f"v_cndmask_b32 v{REC+4*n+3}, v{T3}, v{ADR+i}, s[{sM+2*n}:{sM+2*n+1}]")
        a(f"buffer_load_dwordx3 v[{REC+4*n}:{REC+4*n+2}], v{REC+4*n+3}, s[{S_WS}:{S_WS+3}], 0 offen offset:{96*rho}")
    for rho in range(3):
        for i in range(4): rec_load(rho, i)
    a(f"""
    v_max3_i32 v{T0}, v{LIM}, v{LIM+1}, v{LIM+2}
    v_max_i32 v{T0}, v{T0}, v{LIM+3}
    v_cmp_lt_i32 vcc, 288, v{T0}
    s_mov_b32 s{sXTRA}, 0
    s_cbranch_vccz L2_noxtra1
    s_mov_b32 s{sXTRA}, 1
    """)
    for rho in range(3, 5):
        for i in range(4): rec_load(rho, i)
    a(f"""
    L2_noxtra1:
    v_max3_u32 v{T0}, v{OFFV}, v{OFFV+1}, v{OFFV+2}
    v_max_u32 v{T0}, v{T0}, v{OFFV+3}
    v_cmp_lt_u32 vcc, s{sTMP2}, v{T0}
    s_waitcnt vmcnt(12) lgkmcnt(0)
    s_barrier
    """)
    st()
    a(f"""
    s_cbranch_vccz L2_nomore
    v_mov_b32 v2, {FLG}
    ds_write_b32 v2, v{vONE}
    L2_nomore:
    s_cmp_eq_u32 s{sFIRST}, 0
    s_cbranch_scc1 L2_nofirst3
    s_mov_b32 s{sFIRST}, 0
    """)
    a(f"""
    v_and_b32 v1, 31, v{vL}
    v_lshrrev_b32 v2, 5, v{vL}
    s_and_b32 s3, s{sW}, 1
    s_lshl_b32 s{sTMP}, s3, 12
    s_add_u32 s{sTMP}, s{sTMP}, {XR}
    v_lshlrev_b32 v3, 7, v1
    v_add_u32 v3, s{sTMP}, v3
    v_bfe_u32 v{T0}, v1, 1, 3
    v_xor_b32 v{T0}, v{T0}, v2
    """)
    for s in range(4):
        a(f"v_xor_b32 v{T1}, {2*s}, v{T0}")
        a(f"v_lshl_add_u32 v{T1}, v{T1}, 4, v3")
        a(f"ds_read_b128 v[{PA+4*s}:{PA+4*s+3}], v{T1}")
    a(f"v_lshlrev_b32 v3, 4, v{vL}")
    a(f"v_add_u32 v3, {FRG}, v3")
    for f in range(8):
        a(f"ds_read_b128 v[{WB+4*f}:{WB+4*f+3}], v3 offset:{1024*f}")
    for s in range(4):
        a(f"s_waitcnt lgkmcnt({3-s+8})")
        a(f"v_mfma_f32_32x32x16_bf16 v[{PD}:{PD+15}], v[{PA+4*s}:{PA+4*s+3}], v[{PB+4*s}:{PB+4*s+3}], " + ("0" if s == 0 else f"v[{PD}:{PD+15}]"))
    for f in range(8, 18):
        a(f"ds_read_b128 v[{WB+4*f}:{WB+4*f+3}], v3 offset:{1024*f}")
    a(f"""
    s_lshl_b32 s3, s3, 15
    s_add_u32 s3, s3, {TABI}
    s_bfe_u32 s{sTMP}, s{sW}, 0x10001
    v_lshl_add_u32 v3, v2, 12, v{CJ4}
    v_add_u32 v3, s3, v3
    s_cmp_ge_u32 s{sW}, 4
    s_cbranch_scc1 L2_ugemm
    s_lshl_b32 s{sTMP}, s{sTMP}, 2
    s_add_u32 s{sTMP}, s{sTMP}, 512
    v_add_u32 v3, s{sTMP}, v3
    s_mov_b32 s3, {NLOG2E}
    """)
    for r in range(16):
        a(f"""
        v_mul_f32 v{PD+r}, s3, v{PD+r}
        v_and_b32 v{T0}, 0xffff0000, v{PD+r}
        v_sub_f32 v{PD+r}, v{PD+r}, v{T0}
        v_cvt_pk_bf16_f32 v{PD+r}, v{T0}, v{PD+r}
        """)
        if r & 1:
            q, rr = r >> 2, (r & 3) - 1
            a(f"ds_write2st64_b32 v3, v{PD+r-1}, v{PD+r} offset0:{4*(8*q+rr)} offset1:{4*(8*q+rr+1)}")
    a(f"""
    s_branch L2_nofirst3
    L2_ugemm:
    s_lshl_b32 s{sTMP}, s{sTMP}, 8
    v_add_u32 v3, s{sTMP}, v3
    """)
    for r in range(16):
        a(f"v_cvt_f64_f32 v[{PB+2*r}:{PB+2*r+1}], v{PD+r}")
        a(f"ds_write_b64 v3, v[{PB+2*r}:{PB+2*r+1}] offset:{1024*(8*(r>>2)+(r&3))}")
    a("L2_nofirst3:")
    st()
    def rec_count(n, wait):
        if wait is not None: a(f"s_waitcnt vmcnt({wait})")
        a(f"v_lshrrev_b32 v{REC+4*n+3}, 24, v{REC+4*n+2}")
        a(f"s_mov_b64 exec, s[{sM+2*n}:{sM+2*n+1}]")
        a(f"ds_add_rtn_u32 v{REC+4*n+3}, v{REC+4*n+3}, v{vONE} offset:{CNT}")
        a(f"s_mov_b64 exec, -1")
    for n in range(12): rec_count(n, 11 - n)
    a(f"""
    s_cmp_eq_u32 s{sXTRA}, 0
    s_cbranch_scc1 L2_noxtra2
    """)
    for n in range(12, 20): rec_count(n, None)
    a(f"""
    L2_noxtra2:
    v_lshlrev_b32 v2, 2, v{vL}
    v_mov_b32 v3, {FLG}
    s_waitcnt lgkmcnt(0)
    """)
    st()
    a("s_barrier")
    st()
    a(f"""
    ds_read_b32 v1, v2 offset:{CNT}
    ds_read_b32 v3, v3
    s_waitcnt lgkmcnt(0)
    v_add_u32 v1, 28, v1
    v_and_b32 v1, 0xffffffe0, v1
    v_mov_b32 v2, v1
    v_readfirstlane_b32 s{sMORE}, v3
    """)
    scan64(a, 2)
    a(f"""
    s_nop 0
    v_readlane_b32 s{sT}, v2, 63
    v_sub_u32 v1, v2, v1
    s_cmp_le_u32 s{sT}, {CAP*4}
    s_cbranch_scc1 L2_fits
    s_movk_i32 s{sR}, 180
    s_barrier
    s_branch L2_pass
    L2_fits:
    """)
    def rec_lookup(n, t):
        a(f"v_lshrrev_b32 v{t}, 24, v{REC+4*n+2}")
        a(f"ds_bpermute_b32 v{t}, v{t}, v1")
    def rec_scatter(n, t):
        a(f"v_add_u32 v{t}, v{t}, v{REC+4*n+3}")
        a(f"v_lshlrev_b32 v{REC+4*n+3}, 1, v{t}")
        a(f"s_mov_b64 exec, s[{sM+2*n}:{sM+2*n+1}]")
        a(f"ds_write_b32 v{t}, v{REC+4*n+2} offset:{META}")
        a(f"ds_write_b64 v{REC+4*n+3}, v[{REC+4*n}:{REC+4*n+1}] offset:{EA}")
        a(f"s_mov_b64 exec, -1")
    for n in range(12): rec_lookup(n, PB + n)
    a(f"""
    s_add_u32 s{sT}, s{sT}, 127
    s_lshr_b32 s{sT}, s{sT}, 7
    s_lshr_b32 s{sN}, s{sT}, 3
    s_and_b32 s3, s{sT}, 7
    s_mul_i32 s{sT}, s{sN}, s{sW}
    s_min_u32 s{sTMP}, s3, s{sW}
    s_add_u32 s{sT}, s{sT}, s{sTMP}
    s_cmp_lt_u32 s{sW}, s3
    s_addc_u32 s{sN}, s{sN}, 0
    s_waitcnt lgkmcnt(0)
    """)
    for n in range(12): rec_scatter(n, PB + n)
    a(f"""
    s_cmp_eq_u32 s{sXTRA}, 0
    s_cbranch_scc1 L2_noxtra3
    """)
    for n in range(12, 20): rec_lookup(n, PB + n)
    a("s_waitcnt lgkmcnt(0)")
    for n in range(12, 20): rec_scatter(n, PB + n)
    a(f"""
    L2_noxtra3:
    s_waitcnt lgkmcnt(0)
    s_lshl_b32 s3, s{sT}, 7
    s_add_u32 s{sTMP}, s3, {META}
    v_lshrrev_b32 v1, 3, v{vL}
    v_lshl_add_u32 v{PM4}, v1, 4, s{sTMP}
    v_lshrrev_b32 v1, 5, v{vL}
    v_lshl_add_u32 v{PSM}, v1, 5, s{sTMP}
    s_lshl_b32 s3, s3, 1
    s_add_u32 s{sTMP}, s3, {EA}
    v_and_b32 v1, 19, v{vL}
    v_bfe_u32 v2, v{vL}, 2, 1
    v_bfe_u32 v3, v{vL}, 3, 1
    v_lshl_add_u32 v1, v2, 3, v1
    v_lshl_add_u32 v1, v3, 2, v1
    v_lshl_add_u32 v{PEA}, v1, 3, s{sTMP}
    s_mov_b32 m0, s{sSTG}
    s_barrier
    """)
    st()
    a(f"""
    s_cmp_eq_u32 s{sN}, 0
    s_cbranch_scc1 L2_done
    """)

    def rd_m4(off):   return [f"ds_read_b128 v[{M4}:{M4+3}], v{PM4} offset:{off}"]
    def rd_sm(off):   return [f"ds_read2_b32 v[{SM}:{SM+1}], v{PSM} offset0:{off//4} offset1:{off//4+16}"]
    def mk_g():       return [f"v_and_or_b32 v{M4+i}, v{M4+i}, s{sMSK24}, v{CDMA}" for i in range(4)]
    def mk_ac(ac):    return [f"v_perm_b32 v{ac+i}, v{SM+i}, v{CJ4}, s{sPERM}" for i in range(2)]
    def rd_p(ac, t):  return [f"ds_read_b32 v{WE+4*t+2+i}, v{ac+i} offset:{TABI+512+4*t}" for i in range(2)]
    def dma():        return [f"buffer_load_dwordx4 v{M4+i}, s[{S_XG}:{S_XG+3}], s{sSO+i} offen offset:{1040*i} lds" for i in range(4)]
    def rd_a():       return [f"ds_read_b128 v[{A+4*s}:{A+4*s+3}], v{RA0 if s < 2 else RA1} offset:{32*(s&1)}" for s in range(4)]
    def rd_e(off):    return [f"ds_read_b64 v[{AE}:{AE+1}], v{PEA} offset:{off}"]
    def mfmas(t, Z, H):
        out = []
        for s in range(4):
            f = 2*s + t
            out.append(f"v_mfma_f32_32x32x16_bf16 v[{Z}:{Z+15}], v[{A+4*s}:{A+4*s+3}], v[{WB+4*f}:{WB+4*f+3}], " + ("0" if s == 0 else f"v[{Z}:{Z+15}]"))
        out.append(f"v_mfma_f32_32x32x16_bf16 v[{Z}:{Z+15}], v[{AE}:{AE+3}], v[{WE+4*t}:{WE+4*t+3}], v[{Z}:{Z+15}]")
        for s in range(4):
            f = 2*s + t
            out.append(f"v_mfma_f32_32x32x16_bf16 v[{H}:{H+15}], v[{A+4*s}:{A+4*s+3}], v[{WV+4*f}:{WV+4*f+3}], " + ("0" if s == 0 else f"v[{H}:{H+15}]"))
        return out
    def valu(Z, H, safe):
        out = []
        if not safe:
            ex = lambda i: [(f"v_exp_f32 v{Z+8*p+i}, v{Z+8*p+i}", 8) for p in range(2)]
            out += ex(0) + ex(1)
            out += [(f"v_add_f32 v{DD+p}, 1.0, v{Z+8*p}", 4) for p in range(2)]
            for i in range(1, 8):
                if i < 7: out += ex(i + 1)
                out += [(f"v_fma_f32 v{H+8*p+i}, v{H+8*p+i}, v{DD+p}, v{H+8*p+i-1}", 4) for p in range(2)]
                out += [(f"v_fmac_f32 v{DD+p}, v{DD+p}, v{Z+8*p+i}", 4) for p in range(2)]
                out += [(f"v_fmac_f32 v{H+8*p+i}, v{H+8*p+i-1}, v{Z+8*p+i}", 4) for p in range(2)]
            out += [(f"v_rcp_f32 v{RR+p}, v{DD+p}", 8) for p in range(2)]
            out += [(f"v_max3_f32 v{DMAX}, v{DMAX}, v{DD}, v{DD+1}", 4)]
            out += [(f"v_mul_f32 v{RR+p}, v{RR+p}, v{H+8*p+7}", 4) for p in range(2)]
        else:
            for i in range(16): out.append((f"v_exp_f32 v{Z+i}, v{Z+i}", 8))
            for i in range(16): out.append((f"v_add_f32 v{Z+i}, 1.0, v{Z+i}", 4))
            for i in range(16): out.append((f"v_rcp_f32 v{Z+i}, v{Z+i}", 8))
            out += [(f"v_mul_f32 v{RR+p}, v{Z+8*p}, v{H+8*p}", 4) for p in range(2)]
            for i in range(1, 8):
                out += [(f"v_fmac_f32 v{RR+p}, v{Z+8*p+i}, v{H+8*p+i}", 4) for p in range(2)]
        out += [(f"v_cvt_f64_f32 v[{R64+2*p}:{R64+2*p+1}], v{RR+p}", 4) for p in range(2)]
        return out
    def ds_add(ac, t): return [f"ds_add_f64 v{ac+i}, v[{R64+2*i}:{R64+2*i+1}] offset:{TABI+256*t}" for i in range(2)]

    def weave(vl, mf, first_at, gap, inserts):
        out = []; c = 0; k = 0; nxt = first_at
        for ins, cost in vl:
            while k < len(mf) and c >= nxt:
                if k == 0: out += inserts.get(-1, [])
                out.append(mf[k]); out += inserts.get(k, []); k += 1; nxt += gap
            out.append(ins); c += cost
        assert k == len(mf)
        return out

    def loop(tag, safe):
        gap = opt.get("gap", 26)
        for l in rd_m4(0) + rd_sm(0): a(l)
        a("s_waitcnt lgkmcnt(0)")
        for l in mk_g() + mk_ac(ACA) + dma() + rd_p(ACA, 0) + rd_p(ACA, 1) + rd_e(0) + rd_m4(128): a(l)
        a("s_waitcnt vmcnt(0)")
        for l in rd_a(): a(l)
        a("s_waitcnt lgkmcnt(0)")
        a(f"s_cmp_lt_u32 s{sN}, 2")
        a(f"s_cbranch_scc1 L2_p1{tag}")
        for l in mk_g() + dma(): a(l)
        a(f"L2_p1{tag}:")
        for l in mfmas(0, Z0, H0): a(l)
        a("s_nop 7")
        if not safe: st()
        a(f"L2_loop{tag}:")
        for u in range(2):
            ac, an = (ACA, ACB) if u == 0 else (ACB, ACA)
            o = 128 * u
            for l in rd_m4(o + 256) + rd_sm(o + 128): a(l)
            ins = {3: ["s_waitcnt lgkmcnt(0)"] + mk_ac(an) + rd_p(an, 0) + mk_g(),
                   4: rd_p(an, 1) + rd_e(2 * o + 256),
                   8: ["s_waitcnt vmcnt(0)"] + rd_a()}
            for l in weave(valu(Z0, H0, safe), mfmas(1, Z1, H1), 0, gap, ins): a(l)
            for l in ds_add(ac, 0): a(l)
            pre = ["s_waitcnt lgkmcnt(2)", f"s_cmp_lt_u32 s{sN}, 3", f"s_cbranch_scc1 L2_nd{tag}{u}"] + dma() + [f"L2_nd{tag}{u}:"]
            ins = {-1: pre}
            if u == 1:
                ins[2] = [f"v_add_u32 v{PM4}, 256, v{PM4}", f"v_add_u32 v{PSM}, 256, v{PSM}", f"v_add_u32 v{PEA}, 512, v{PEA}"]
            for l in weave(valu(Z1, H1, safe), mfmas(0, Z0, H0), 32, gap, ins): a(l)
            for l in ds_add(ac, 1): a(l)
            a(f"s_sub_u32 s{sN}, s{sN}, 1")
            a(f"s_cmp_eq_u32 s{sN}, 0")
            if u == 0: a(f"s_cbranch_scc1 L2_done")
            else:      a(f"s_cbranch_scc0 L2_loop{tag}")
    a(f"s_cmp_lg_u32 s{sSAFE}, 0")
    a("s_cbranch_scc1 L2_safe")
    loop("f", False)
    a(f"""
    L2_done:
    v_cmp_lt_f32 vcc, 0x5f800000, v{DMAX}
    s_cbranch_vccz L2_okd
    v_mov_b32 v2, {FLG+4}
    ds_write_b32 v2, v{vONE}
    L2_okd:
    s_waitcnt lgkmcnt(0)
    """)
    st()
    a("s_barrier")
    st()
    a(f"""
    s_cmp_eq_u32 s{sMORE}, 0
    s_cbranch_scc1 L2_epi
    s_add_u32 s{sBASE}, s{sBASE}, s{sR}
    s_movk_i32 s{sR}, 480
    s_branch L2_pass
    L2_epi:
    v_lshrrev_b32 v2, 3, v0
    v_and_b32 v3, 7, v0
    v_min_u32 v1, 49, v2
    v_lshlrev_b32 v1, 10, v1
    v_lshl_add_u32 v1, v3, 6, v1
    v_add_u32 v1, {TAB}, v1
    ds_read_b128 v[{H1}:{H1+3}], v1
    ds_read_b128 v[{H1+4}:{H1+7}], v1 offset:16
    ds_read_b128 v[{H1+8}:{H1+11}], v1 offset:32
    ds_read_b128 v[{H1+12}:{H1+15}], v1 offset:48
    v_lshlrev_b32 v2, 15, v2
    v_lshl_add_u32 v2, v3, 4, v2
    s_lshl_b32 s3, s{sBETA}, 7
    v_add_u32 v2, s3, v2
    s_mov_b32 s3, {NLOG2E}
    s_waitcnt lgkmcnt(0)
    """)
    for i in range(8): a(f"v_cvt_f32_f64 v{Z1+i}, v[{H1+2*i}:{H1+2*i+1}]")
    for i in range(8): a(f"v_mul_f32 v{H1+i}, s3, v{Z1+i}")
    for i in range(8): a(f"v_exp_f32 v{H1+i}, v{H1+i}")
    a(f"v_mul_f32 v{T0}, 0, v{Z1}")
    for i in range(8): a(f"v_add_f32 v{H1+i}, 1.0, v{H1+i}")
    for i in range(8): a(f"v_rcp_f32 v{H1+i}, v{H1+i}")
    for i in range(1, 8): a(f"v_fmac_f32 v{T0}, 0, v{Z1+i}")
    for i in range(8): a(f"v_mul_f32 v{H1+i}, v{H1+i}, v{Z1+i}")
    for i in range(4): a(f"v_cvt_pk_bf16_f32 v{H1+8+i}, v{H1+2*i}, v{H1+2*i+1}")
    a(f"""
    buffer_store_dwordx4 v[{H1+8}:{H1+11}], v2, s[{S_OUT}:{S_OUT+3}], 0 offen
    """)
    st()
    if opt.get("stamp"): a("s_waitcnt vmcnt(0)")
    st(); st.real()
    st.flush(S_WS, 1)
    a(f"""
    s_cmp_lg_u32 s{sSAFE}, 0
    s_cbranch_scc1 L2_end
    v_cmp_u_f32 vcc, v{T0}, v{T0}
    v_mov_b32 v2, {FLG+4}
    s_cbranch_vccz L2_oke
    ds_write_b32 v2, v{vONE}
    L2_oke:
    s_waitcnt lgkmcnt(0)
    s_barrier
    ds_read_b32 v1, v2
    s_waitcnt lgkmcnt(0)
    v_readfirstlane_b32 s3, v1
    s_cmp_eq_u32 s3, 0
    s_cbranch_scc1 L2_end
    s_mov_b32 s{sSAFE}, 1
    s_branch L2_start
    L2_end:
    s_endpgm
    L2_safe:
    """)
    loop("s", True)
    a("s_branch L2_done")
    return a.text(), NV, 90, LDS

HEADER = open("gather_scatter__edge_featured_mpnn_egc__graph.s.ref").read().split("; Override launch")[0]

def kd(name, nv, ns):
    return f""".amdhsa_kernel {name}
  .amdhsa_next_free_vgpr {nv}
  .amdhsa_next_free_sgpr {ns}
  .amdhsa_accum_offset {(nv+3)//4*4}
  .amdhsa_group_segment_fixed_size 0
  .amdhsa_kernarg_size 80
  .amdhsa_user_sgpr_count 2
  .amdhsa_user_sgpr_kernarg_segment_ptr 1
  .amdhsa_system_sgpr_workgroup_id_x 1
  .amdhsa_float_denorm_mode_32 3
.end_amdhsa_kernel
"""

def generate(opt):
    b1, nv1, ns1, lds1 = gen_bin(opt)
    b2, nv2, ns2, lds2 = gen_main(opt)
    K1, K2 = "egc_bin_kernel", "gather_scatter__edge_featured_mpnn_egc__graph_kernel"
    s = HEADER
    s += f"; @launch kernel={K1} grid=(256,1,1) block=(832,1,1) lds={lds1}\n"
    s += f"; @launch kernel={K2} grid=(256,1,1) block=(512,1,1) lds={lds2}\n"
    s += '.amdgcn_target "amdgcn-amd-amdhsa--gfx950"\n.text\n'
    for name, body in ((K1, b1), (K2, b2)):
        s += f".globl {name}\n.p2align 8\n.type {name},@function\n{name}:\n{body}"
    s += '.section .rodata,"a"\n.p2align 6\n' + kd(K1, nv1, ns1) + ".p2align 6\n" + kd(K2, nv2, ns2)
    return s

if __name__ == "__main__":
    opt = {}
    out = "gather_scatter__edge_featured_mpnn_egc__graph.s"
    for x in sys.argv[1:]:
        k, v = x.split("=", 1)
        if k == "out": out = v
        else:
            try: v = int(v)
            except ValueError: pass
            opt[k] = v
    open(out, "w").write(generate(opt))
    print("wrote", out)
```

```python
import sys
s=open(sys.argv[1]).read()
k1n = [l for l in s.split("\n") if l.startswith("; @launch kernel=")][0].split("=")[1].split()[0]
s=s.replace(k1n+":\n", k1n+":\n    s_memrealtime s[92:93]\n    s_load_dwordx2 s[94:95], s[0:1], 72\n    v_readfirstlane_b32 s98, v0\n",1)
dbg = """s_waitcnt vmcnt(0)
    s_memrealtime s[96:97]
    s_waitcnt lgkmcnt(0)
    s_and_b32 s97, s2, 63
    s_cmp_lg_u32 s97, 5
    s_cbranch_scc1 L_dbg1
    s_cmp_lg_u32 s98, 0
    s_cbranch_scc1 L_dbg1
    s_mov_b64 exec, 1
    s_lshr_b32 s97, s2, 6
    s_lshl_b32 s97, s97, 7
    s_add_u32 s97, s97, 0xF000000
    v_mov_b32 v1, s97
    v_mov_b32 v2, s92
    v_mov_b32 v3, s96
    global_store_dwordx2 v1, v[2:3], s[94:95]
L_dbg1:
    s_endpgm
"""
i=s.index("s_endpgm")
s=s[:i]+dbg+s[i+len("s_endpgm\n"):]
k2="gather_scatter__edge_featured_mpnn_egc__graph_kernel:\n"
s=s.replace(k2, k2+"    s_memrealtime s[92:93]\n    s_load_dwordx4 s[96:99], s[0:1], 64\n    v_readfirstlane_b32 s100, v0\n",1)
dbg2 = """L2_end:
    s_waitcnt vmcnt(0)
    s_memrealtime s[94:95]
    s_waitcnt lgkmcnt(0)
    s_cmp_ge_u32 s2, 256
    s_cbranch_scc1 L_dbg2
    s_and_b32 s95, s2, 63
    s_cmp_lg_u32 s95, 5
    s_cbranch_scc1 L_dbg2
    s_cmp_lg_u32 s100, 0
    s_cbranch_scc1 L_dbg2
    s_mov_b64 exec, 1
    s_lshr_b32 s95, s2, 6
    s_lshl_b32 s93, s95, 7
    s_add_u32 s93, s93, 0xF000000
    v_mov_b32 v1, s93
    global_load_dwordx2 v[2:3], v1, s[98:99]
    v_mov_b32 v4, s92
    v_mov_b32 v5, s94
    s_lshl_b32 s95, s95, 4
    v_mov_b32 v1, s95
    s_waitcnt vmcnt(0)
    v_sub_u32 v3, v3, v2
    v_sub_u32 v4, v4, v2
    v_sub_u32 v5, v5, v2
    v_and_b32 v2, 0xffff, v2
    global_store_dwordx4 v1, v[2:5], s[96:97]
L_dbg2:
"""
s=s.replace("L2_end:\n", dbg2)
import re
s=re.sub(r"\.amdhsa_next_free_sgpr \d+", ".amdhsa_next_free_sgpr 102", s)
open(sys.argv[2],'w').write(s)
```

```python
import sys,re
src, which, out = sys.argv[1:4]
s=open(src).read()
L=[l for l in s.split("\n") if l.startswith("; @launch kernel=")]
k1n = L[0].split("=")[1].split()[0]
nw1 = int(re.search(r"block=\((\d+)", L[0]).group(1))//64
k2="gather_scatter__edge_featured_mpnn_egc__graph_kernel:\n"
i2=s.index(k2)
a,b=s[:i2],s[i2:]
a=a.replace(k1n+":\n", k1n+":\n    s_memrealtime s[92:93]\n    s_load_dwordx2 s[94:95], s[0:1], 72\n    v_readfirstlane_b32 s98, v0\n",1)
a=a.replace("    s_endpgm\n","    s_branch L_dbg1\n")
j=a.rindex(".globl")
a=a[:j]+"""L_dbg1:
    s_waitcnt vmcnt(0)
    s_memrealtime s[96:97]
    s_waitcnt lgkmcnt(0)
    s_cmp_ge_u32 s2, 256
    s_cbranch_scc1 L_dbg1e
    s_mov_b64 exec, 1
    s_lshl_b32 s97, s2, 7
    s_lshr_b32 s98, s98, 3
    s_add_u32 s97, s97, s98
    s_add_u32 s97, s97, 0xF000000
    v_mov_b32 v1, s97
    v_mov_b32 v2, s92
    v_mov_b32 v3, s96
    global_store_dwordx2 v1, v[2:3], s[94:95]
L_dbg1e:
    s_endpgm
"""+a[j:]
b=b.replace(k2, k2+"    s_memrealtime s[92:93]\n    s_load_dwordx4 s[96:99], s[0:1], 64\n    v_readfirstlane_b32 s100, v0\n",1)
ld=""
for g in range(4):
    for w in range(nw1):
        ld+=f"""    global_load_dwordx2 v[2:3], v1, s[98:99] offset:{8*w}
    s_waitcnt vmcnt(0)
    v_sub_u32 v2, s92, v2
    v_sub_u32 v3, s92, v3
    v_max_u32 v8, v8, v2
    v_min_u32 v10, v10, v2
    v_min_u32 v9, v9, v3
"""
    ld+="    v_add_u32 v1, 8192, v1\n"
red=""
for l in range(64):
    red+=f"    v_readlane_b32 s93, v8, {l}\n    s_max_u32 s40, s40, s93\n    v_readlane_b32 s93, v9, {l}\n    s_min_u32 s41, s41, s93\n    v_readlane_b32 s93, v10, {l}\n    s_min_u32 s42, s42, s93\n"
sel={"none":"s_mov_b32 s93, 0","k2start":"s_mov_b32 s93, s40","gap":"s_mov_b32 s93, s41","laststart":"s_sub_u32 s93, s40, s42","k2":"s_sub_u32 s93, s94, s92"}[which]
dbg2 = f"""L2_end:
    s_waitcnt vmcnt(0)
    s_memrealtime s[94:95]
    s_waitcnt lgkmcnt(0)
    s_cmp_lg_u32 s2, 5
    s_cbranch_scc1 L_dbg2
    s_cmp_lg_u32 s100, 0
    s_cbranch_scc1 L_dbg2
    s_mov_b64 exec, -1
    v_lshlrev_b32 v1, 7, v0
    v_add_u32 v1, 0xF000000, v1
    v_mov_b32 v8, 0
    v_mov_b32 v9, -1
    v_mov_b32 v10, -1
{ld}
    s_mov_b32 s40, 0
    s_mov_b32 s41, -1
    s_mov_b32 s42, -1
{red}
    v_mov_b32 v2, s40
    v_mov_b32 v3, s41
    v_mov_b32 v4, s42
    s_sub_u32 s93, s94, s92
    v_mov_b32 v5, s93
    v_mov_b32 v1, 0
    s_mov_b64 exec, 1
    global_store_dwordx4 v1, v[2:5], s[96:97]
    {sel}
    s_min_u32 s93, s93, 10000
    s_mul_i32 s93, s93, 10
    s_add_u32 s93, s93, s92
    s_add_u32 s93, s93, 6000
L_spin:
    s_memrealtime s[94:95]
    s_waitcnt lgkmcnt(0)
    s_sub_u32 s95, s93, s94
    s_cmp_gt_i32 s95, 0
    s_cbranch_scc1 L_spin
L_dbg2:
"""
b=b.replace("L2_end:\n", dbg2)
s=a+b
s=re.sub(r"\.amdhsa_next_free_sgpr \d+", ".amdhsa_next_free_sgpr 102", s)
open(out,'w').write(s)
```
